```python
import torch

def _softmax(x, axis=-1):
    return torch.softmax(x, dim=axis)
def _gelu(x):
    return torch.nn.functional.gelu(x, approximate="tanh")
def _silu(x):
    return torch.nn.functional.silu(x)
def _sigmoid(x):
    return torch.sigmoid(x)
def _layernorm(x, axis=-1, eps=1e-5):
    m = x.mean(dim=axis, keepdim=True)
    v = x.var(dim=axis, keepdim=True, unbiased=False)
    return (x - m) / torch.sqrt(v + eps)
def _scatter_add(tgt, idx, src, axis=0):
    return tgt.clone().index_add_(axis, idx, src)
def _segment_sum(src, seg, n):
    out = torch.zeros((n,) + src.shape[1:], dtype=src.dtype)
    return out.index_add_(0, seg, src)
def _pad(x, pw):
    flat = tuple(v for pair in reversed(pw) for v in pair)
    return torch.nn.functional.pad(x, flat)

kernel_name = 'standalone__low_rank_proj_linformer__decode'

def setup_inputs():

    _w = (lambda a: (lambda t: t.to(torch.bfloat16) if t.is_floating_point() else t)(torch.as_tensor(a)))
    B, H, Sq, Skv, Dh, R = 1, 32, 1, 4096, 192, 64
    return {
        "q": _w((lambda *s: torch.randn(*s, dtype=torch.bfloat16) * 0.8)(B, H, Sq, Dh)),
        "k": _w((lambda *s: torch.randn(*s, dtype=torch.bfloat16) * 0.8)(B, H, Skv, Dh)),
        "v": _w((lambda *s: torch.randn(*s, dtype=torch.bfloat16) * 0.05)(B, H, Skv, Dh)),
        "e_proj": _w((lambda *s: torch.randn(*s, dtype=torch.bfloat16) * 0.8)(R, Skv) * (Skv ** -0.5)),
        "f_proj": _w((lambda *s: torch.randn(*s, dtype=torch.bfloat16) * 0.05)(R, Skv) * (Skv ** -0.5)),
    }

def reference(q, k, v, e_proj, f_proj):
    B, H, Sq, Dh = q.shape
    kp = torch.einsum("rn,bhnd->bhrd", e_proj, k)
    vp = torch.einsum("rn,bhnd->bhrd", f_proj, v)
    scores = torch.einsum("bhqd,bhrd->bhqr", q, kp) * (Dh ** -0.5)
    p = _softmax(scores, axis=-1)
    o = torch.einsum("bhqr,bhrd->bhqd", p, vp)
    return o
```

```python
import argparse

KNAME = "standalone__low_rank_proj_linformer__decode_kernel"

class Gen:
    def __init__(s, a):
        s.a = a
        s.L = []
        s.ops_c = []
        s.ops_o = []
        s.nlab = 0
    def A(s, x): s.L.append(x)
    def op(s, label, n=1, ctrl_only=False):
        s.ops_c += [label]*n
        if not ctrl_only: s.ops_o += [label]*n
    @staticmethod
    def younger(ops, labels):
        last = -1
        for i, o in enumerate(ops):
            if o in labels: last = i
        if last < 0: return None
        return len(ops)-1-last
    def wait_vm(s, *labels):
        nc = s.younger(s.ops_c, labels); no = s.younger(s.ops_o, labels)
        if nc is None: nc = 63
        if no is None: no = 63
        nc = min(nc, 63); no = min(no, 63)
        if nc == no:
            s.A("  s_waitcnt vmcnt(%d)" % nc)
        else:
            assert nc > no
            s.nlab += 1
            s.A("  s_waitcnt vmcnt(%d)" % nc)
            s.A("  s_cmp_eq_u32 s3, 0")
            s.A("  s_cbranch_scc1 L_w%d" % s.nlab)
            s.A("  s_waitcnt vmcnt(%d)" % no)
            s.A("L_w%d:" % s.nlab)

WAVE_LDS = 34816
RING = 16384
STAGE = 6144
SCR = 4*WAVE_LDS
SCR_S = SCR
SCR_P = SCR + 1024
SCR_O = SCR + 1280
LDS_TOTAL = SCR_O + 3072
WS_S = 0
WS_O = 131072
WS_BYTES = WS_O + 256*768
V_KV = 1
V_E = 4
V_TR = 6
V_EA = 8
V_Q = 12
V_T = 18
V_S = 32
ACC = 64
def acc(rh, t): return ACC + (rh*6+t)*16

def gen(a):
    g = Gen(a); A = g.A
    NT = " nt" if a.nt else ""
    for l in open("standalone__low_rank_proj_linformer__decode.s.ref").read().split("\n"):
        if l.startswith("; @launch") or not l.startswith(";"): break
        if l.startswith("; Override") or l.startswith("; grid=ceil"): continue
        A(l)
    A("; @launch grid=(256,1,1) block=(256,1,1) lds=%d" % LDS_TOTAL)
    A('.amdgcn_target "amdgcn-amd-amdhsa--gfx950"')
    A(".text\n.globl %s\n.p2align 8\n.type %s,@function\n%s:" % (KNAME, KNAME, KNAME))
    A("  s_cmp_ge_u32 s2, 256")
    A("  s_cbranch_scc1 L_end")
    A("  s_load_dwordx16 s[24:39], s[0:1], 0")
    if a.stamps: A("  s_memrealtime s[70:71]")
    A("  v_lshrrev_b32 v18, 6, v0")
    A("  v_and_b32 v0, 63, v0")
    A("  v_readfirstlane_b32 s3, v18")
    A("  v_lshlrev_b32 v19, 4, v0")
    A("  s_movk_i32 s60, 2731")
    for j in range(3):
        A("  v_add_u32 v20, %d, v0" % (j*64))
        A("  v_mul_u32_u24 v20, s60, v20")
        A("  v_lshrrev_b32 v20, 16, v20")
        A("  v_and_b32 v20, 2, v20")
        A("  v_lshlrev_b32 v20, 5, v20")
        A("  v_xor_b32 v%d, v19, v20" % (V_KV+j))
    A("  s_lshl_b32 s56, s2, 2")
    A("  s_add_u32 s56, s56, s3")
    A("  s_mul_i32 s56, s56, 49152")
    A("  s_mul_i32 s58, s3, %d" % WAVE_LDS)
    A("  s_and_b32 s61, s2, 7")
    A("  s_lshr_b32 s62, s2, 3")
    A("  s_lshl_b32 s59, s61, 10")
    A("  s_lshl_b32 s60, s3, 8")
    A("  s_add_u32 s59, s59, s60")
    A("  s_mov_b32 s10, 50331648\n  s_mov_b32 s11, 0x20000")
    A("  s_mov_b32 s14, 50331648\n  s_mov_b32 s15, 0x20000")
    A("  s_mov_b32 s18, 524288\n  s_mov_b32 s19, 0x20000")
    A("  s_mov_b32 s22, 524288\n  s_mov_b32 s23, 0x20000")
    A("  v_lshrrev_b32 v20, 3, v0")
    A("  v_lshlrev_b32 v20, 13, v20")
    A("  v_lshrrev_b32 v21, 4, v0")
    A("  v_and_b32 v22, 7, v0")
    A("  v_xor_b32 v22, v22, v21")
    A("  v_lshl_add_u32 v%d, v22, 4, v20" % V_E)
    A("  v_xor_b32 v%d, 64, v%d" % (V_E+1, V_E))
    A("  s_waitcnt lgkmcnt(0)")
    A("  s_mov_b32 s8, s26\n  s_mov_b32 s9, s27")
    A("  s_mov_b32 s16, s30\n  s_mov_b32 s17, s31")

    def dma_kv(stage):
        srd = "s[8:11]" if stage < 8 else "s[12:15]"
        kt = stage % 8; slot = stage % a.ring
        for half in range(2):
            A("  s_add_u32 m0, s58, %d" % (RING + slot*STAGE + half*3072))
            A("  s_add_u32 s57, s56, %d" % (kt*STAGE + half*3072))
            for j in range(3):
                A("  buffer_load_dwordx4 v%d, %s, s57 offen offset:%d%s lds" % (V_KV+j, srd, j*1024, NT))
        g.op("S%d" % stage, 6)
    def dma_e(which, hh):
        srd = "s[16:19]" if which == 'E' else "s[20:23]"
        for i in range(8):
            if i % 4 == 0:
                A("  s_add_u32 m0, s58, %d" % (hh*8192 + i*1024))
            A("  s_add_u32 s57, s59, %d" % (hh*128 + i*65536 - (i & 3)*1024))
            A("  buffer_load_dwordx4 v%d, %s, s57 offen offset:%d lds" % (V_E + (i & 1), srd, (i & 3)*1024))
        g.op("%s%d" % (which, hh), 8)

    dma_kv(0)
    dma_e('E', 0)
    A("  s_mov_b32 s12, s28\n  s_mov_b32 s13, s29")
    A("  s_mov_b32 s20, s32\n  s_mov_b32 s21, s33")
    dma_kv(1)
    A("  s_mov_b32 s40, s38\n  s_mov_b32 s41, s39\n  s_mov_b32 s42, %d\n  s_mov_b32 s43, 0x20000" % WS_BYTES)
    A("  s_mov_b32 s44, s34\n  s_mov_b32 s45, s35\n  s_mov_b32 s46, 12288\n  s_mov_b32 s47, 0x20000")
    A("  s_mov_b32 s48, s36\n  s_mov_b32 s49, s37\n  s_mov_b32 s50, 256\n  s_mov_b32 s51, 0x20000")
    A("  s_mov_b32 s52, s24\n  s_mov_b32 s53, s25\n  s_mov_b32 s54, 12288\n  s_mov_b32 s55, 0x20000")
    A("  v_and_b32 v20, 31, v0")
    A("  v_lshlrev_b32 v21, 1, v20")
    A("  s_mul_i32 s60, s62, 384")
    for t in range(6): A("  v_mov_b32 v%d, 0" % (V_Q+t))
    for t in range(6):
        A("  buffer_load_short_d16_hi v%d, v21, s[52:55], s60 offen offset:%d" % (V_Q+t, t*64))
    g.op("Q", 6)
    dma_kv(2)
    dma_e('E', 1)
    A("  s_cmp_eq_u32 s3, 0")
    A("  s_cbranch_scc0 L_pro1")
    A("  s_lshl_b32 s63, s2, 9")
    A("  s_mul_i32 s64, s2, 768")
    A("  s_add_u32 s64, s64, %d" % WS_O)
    A("  v_mov_b32 v22, 4")
    A("  buffer_load_dword v23, v22, s[40:43], s63 offen sc1")
    A("  v_mov_b32 v24, -1\n  v_mov_b32 v25, -1\n  v_mov_b32 v26, -1\n  v_mov_b32 v27, -1")
    A("  v_lshlrev_b32 v22, 4, v0")
    A("  s_mov_b32 exec_lo, -1\n  s_mov_b32 exec_hi, 0xffff")
    A("  buffer_store_dwordx4 v[24:27], v22, s[40:43], s64 offen sc1")
    A("  s_mov_b64 exec, -1")
    A("L_pro1:")
    g.op("TAG", 1, True); g.op("CLR", 1, True)
    A("  v_lshrrev_b32 v20, 5, v0")
    A("  v_lshlrev_b32 v20, 3, v20")
    A("  v_bfe_u32 v21, v0, 2, 2")
    A("  v_add_u32 v20, v20, v21")
    A("  v_mul_u32_u24 v20, 384, v20")
    A("  v_bfe_u32 v21, v0, 4, 1")
    A("  v_lshl_add_u32 v20, v21, 5, v20")
    A("  v_and_b32 v21, 3, v0")
    A("  v_lshl_add_u32 v20, v21, 3, v20")
    A("  s_add_u32 s60, s58, %d" % RING)
    A("  v_add_u32 v20, s60, v20")
    A("  v_bfe_u32 v21, v0, 3, 1")
    A("  v_lshlrev_b32 v21, 6, v21")
    A("  v_add_u32 v%d, v20, v21" % V_TR)
    A("  v_sub_u32 v%d, v20, v21" % (V_TR+1))
    A("  v_and_b32 v20, 31, v0")
    A("  v_bfe_u32 v21, v0, 1, 3")
    A("  v_lshrrev_b32 v22, 5, v0")
    A("  v_xor_b32 v21, v21, v22")
    A("  v_lshlrev_b32 v21, 4, v21")
    A("  v_lshl_add_u32 v20, v20, 7, v21")
    A("  v_add_u32 v%d, s58, v20" % V_EA)
    for ks in range(1, 4):
        A("  v_xor_b32 v%d, %d, v%d" % (V_EA+ks, ks*32, V_EA))

    def stage(s):
        slot = s % a.ring; base = slot*STAGE
        ksl = s % 8; hh = ksl >> 2; ks = ksl & 3
        need = ["S%d" % s]
        if ksl == 0: need.append(("E0" if s < 8 else "F0"))
        if ksl == 4: need.append(("E1" if s < 8 else "F1"))
        g.wait_vm(*need)
        if a.stamps: A("  s_memrealtime s[%d:%d]" % (72+2*(s//2), 73+2*(s//2))) if s % 2 == 1 else None
        pre_hooks(s)
        A("  ds_read_b128 a[24:27], v%d offset:%d" % (V_EA+ks, hh*8192))
        A("  ds_read_b128 a[28:31], v%d offset:%d" % (V_EA+ks, hh*8192+4096))
        for t in range(6):
            va = V_TR + (t & 1)
            A("  ds_read_b64_tr_b16 a[%d:%d], v%d offset:%d" % (4*t, 4*t+1, va, base + t*64))
            A("  ds_read_b64_tr_b16 a[%d:%d], v%d offset:%d" % (4*t+2, 4*t+3, va, base + t*64 + 1536))
        for t in range(6):
            A("  s_waitcnt lgkmcnt(%d)" % (2*(5-t)))
            if t == 5:
                mid_hooks(s)
                if s + a.ring < 16: dma_kv(s + a.ring)
                if s == 3: dma_e('F', 0)
                if s == 7: dma_e('F', 1)
            for rh in range(2):
                c = "0" if ksl == 0 else "v[%d:%d]" % (acc(rh, t), acc(rh, t)+15)
                A("  v_mfma_f32_32x32x16_bf16 v[%d:%d], a[%d:%d], a[%d:%d], %s" % (acc(rh, t), acc(rh, t)+15, 24+4*rh, 27+4*rh, 4*t, 4*t+3, c))
        post_hooks(s)

    def pre_hooks(s):
        if s == 0:
            A("  s_cmp_eq_u32 s3, 0")
            A("  s_cbranch_scc0 L_n1")
            g.nlab += 1
            n = g.younger(g.ops_c, ["TAG"])
            A("  s_waitcnt vmcnt(%d)" % n)
            A("  s_mov_b32 s60, 0x9E3779B1")
            A("  v_mul_lo_u32 v23, v23, s60")
            A("  v_add_u32 v23, 0x632BE5AB, v23")
            A("  v_or_b32 v24, 1, v23")
            A("  v_mov_b32 v25, 0")
            A("  s_lshl_b32 s60, s62, 2")
            A("  v_mov_b32 v22, s60")
            A("  v_mov_b32 v26, v24")
            A("  s_mov_b64 exec, 1")
            A("  buffer_atomic_cmpswap v[24:25], v22, s[48:51], 0 offen sc0")
            A("  s_mov_b64 exec, -1")
            A("L_n1:")
            g.op("CAS", 1, True)
        if s == a.chk_stage:
            softmax()

    def mid_hooks(s):
        if s == a.ld_stage:
            A("  s_cmp_eq_u32 s3, 0")
            A("  s_cbranch_scc0 L_ld1")
            score_loads()
            A("L_ld1:")
            g.op("SC", 8, True)

    def score_loads():
        A("  s_and_b32 s60, s2, 0xf8")
        A("  s_lshl_b32 s60, s60, 9")
        A("  v_lshlrev_b32 v22, 3, v0")
        for c in range(8):
            A("  buffer_load_dwordx2 v[%d:%d], v22, s[40:43], s60 offen offset:%d sc1" % (V_S+2*c, V_S+2*c+1, c*512))

    def softmax():
        A("  s_cmp_eq_u32 s3, 0")
        A("  s_cbranch_scc0 L_sm_done")
        n = g.younger(g.ops_c, ["SC"])
        A("  s_waitcnt vmcnt(%d)" % n)
        A("  s_mov_b32 s66, 0")
        A("L_sm_chk:")
        A("  v_cmp_ne_u32 vcc, s65, v%d" % (V_S+1))
        for c in range(1, 8):
            A("  v_cmp_ne_u32 s[68:69], s65, v%d" % (V_S+2*c+1))
            A("  s_or_b64 vcc, vcc, s[68:69]")
        A("  s_nop 4")
        A("  s_cbranch_vccz L_sm_ok")
        A("  s_add_u32 s66, s66, 1")
        A("  s_cmp_ge_u32 s66, %d" % a.spin)
        A("  s_cbranch_scc1 L_sm_ok")
        score_loads()
        A("  s_waitcnt vmcnt(0)")
        A("  s_branch L_sm_chk")
        A("L_sm_ok:")
        A("  v_add_f32 v20, v%d, v%d" % (V_S, V_S+2))
        for c in range(2, 8):
            A("  v_add_f32 v20, v20, v%d" % (V_S+2*c))
        A("  v_mul_f32 v20, 0x%08x, v20" % f32bits(192**-0.5 * 1.4426950408889634))
        A("  v_mov_b32 v21, v20")
        for sh in (8, 4, 2, 1):
            A("  s_nop 1")
            A("  v_max_f32_dpp v21, v21, v21 row_ror:%d row_mask:0xf bank_mask:0xf" % sh)
        A("  v_mov_b32 v22, v21")
        A("  s_nop 1")
        A("  v_permlane16_swap_b32 v21, v22")
        A("  v_max_f32 v21, v21, v22")
        A("  v_mov_b32 v22, v21")
        A("  s_nop 1")
        A("  v_permlane32_swap_b32 v21, v22")
        A("  v_max_f32 v21, v21, v22")
        A("  v_sub_f32 v20, v20, v21")
        A("  v_exp_f32 v20, v20")
        A("  s_nop 0")
        A("  v_mov_b32 v21, v20")
        for sh in (8, 4, 2, 1):
            A("  s_nop 1")
            A("  v_add_f32_dpp v21, v21, v21 row_ror:%d row_mask:0xf bank_mask:0xf" % sh)
        A("  v_mov_b32 v22, v21")
        A("  s_nop 1")
        A("  v_permlane16_swap_b32 v21, v22")
        A("  v_add_f32 v21, v21, v22")
        A("  v_mov_b32 v22, v21")
        A("  s_nop 1")
        A("  v_permlane32_swap_b32 v21, v22")
        A("  v_add_f32 v21, v21, v22")
        A("  v_rcp_f32 v21, v21")
        A("  s_nop 0")
        A("  v_mul_f32 v20, v20, v21")
        A("  v_lshlrev_b32 v22, 2, v0")
        A("  v_add_u32 v22, %d, v22" % SCR_P)
        A("  ds_write_b32 v22, v20")
        A("  s_waitcnt lgkmcnt(0)")
        A("L_sm_done:")

    def post_hooks(s):
        if s == 7: k_epilogue()
        if s == a.bar2_stage:
            A("  s_barrier")
            A("  v_lshrrev_b32 v20, 5, v0")
            A("  v_lshlrev_b32 v20, 4, v20")
            A("  v_add_u32 v20, %d, v20" % SCR_P)
            for rh in range(2):
                for vq in range(4):
                    A("  ds_read_b128 v[%d:%d], v20 offset:%d" % (V_S+rh*16+vq*4, V_S+rh*16+vq*4+3, (32*rh+8*vq)*4))

    def k_epilogue():
        g.wait_vm("Q")
        A("  s_nop 15")
        for t in range(6):
            for rh in range(2):
                for vp in range(8):
                    d = V_S + rh*16 + 2*vp; x = acc(rh, t) + 2*vp
                    qreg = V_Q + t
                    qp = qreg & ~1; sel = qreg & 1
                    if t == 0:
                        A("  v_pk_mul_f32 v[%d:%d], v[%d:%d], v[%d:%d] op_sel:[0,%d] op_sel_hi:[1,%d]" % (d, d+1, x, x+1, qp, qp+1, sel, sel))
                    else:
                        A("  v_pk_fma_f32 v[%d:%d], v[%d:%d], v[%d:%d], v[%d:%d] op_sel:[0,%d,0] op_sel_hi:[1,%d,1]" % (d, d+1, x, x+1, qp, qp+1, d, d+1, sel, sel))
        A("  s_nop 1")
        for v in range(16):
            A("  v_permlane16_swap_b32 v%d, v%d" % (V_S+v, V_S+16+v))
        for v in range(16):
            A("  v_add_f32 v%d, v%d, v%d" % (V_S+v, V_S+v, V_S+16+v))
        A("  s_nop 1")
        for v in range(8):
            A("  v_add_f32_dpp v%d, v%d, v%d row_ror:8 row_mask:0xf bank_mask:0x3" % (V_S+v, V_S+v, V_S+v))
        for v in range(8):
            A("  v_add_f32_dpp v%d, v%d, v%d row_ror:8 row_mask:0xf bank_mask:0xc" % (V_S+v, V_S+8+v, V_S+8+v))
        A("  s_nop 1")
        for v in range(4):
            A("  v_add_f32_dpp v%d, v%d, v%d row_half_mirror row_mask:0xf bank_mask:0x5" % (V_S+v, V_S+v, V_S+v))
        for v in range(4):
            A("  v_add_f32_dpp v%d, v%d, v%d row_half_mirror row_mask:0xf bank_mask:0xa" % (V_S+v, V_S+4+v, V_S+4+v))
        A("  s_nop 1")
        for v in range(4):
            A("  v_add_f32_dpp v%d, v%d, v%d quad_perm:[1,0,3,2] row_mask:0xf bank_mask:0xf" % (V_S+v, V_S+v, V_S+v))
        A("  s_nop 1")
        for v in range(4):
            A("  v_add_f32_dpp v%d, v%d, v%d quad_perm:[2,3,0,1] row_mask:0xf bank_mask:0xf" % (V_S+v, V_S+v, V_S+v))
        A("  v_bfe_u32 v20, v0, 2, 3")
        A("  v_lshlrev_b32 v20, 5, v20")
        A("  v_lshrrev_b32 v21, 5, v0")
        A("  v_lshl_add_u32 v20, v21, 4, v20")
        A("  s_lshl_b32 s60, s3, 8")
        A("  s_add_u32 s60, s60, %d" % SCR_S)
        A("  v_add_u32 v20, s60, v20")
        A("  s_mov_b32 exec_lo, 0x11111111\n  s_mov_b32 exec_hi, 0x11111111")
        A("  ds_write_b128 v20, v[%d:%d]" % (V_S, V_S+3))
        A("  s_mov_b64 exec, -1")
        A("  s_waitcnt lgkmcnt(0)")
        A("  s_barrier")
        A("  s_cmp_eq_u32 s3, 0")
        A("  s_cbranch_scc0 L_pub1")
        A("  v_lshlrev_b32 v20, 2, v0")
        A("  v_add_u32 v20, %d, v20" % SCR_S)
        for w in range(4):
            A("  ds_read_b32 v%d, v20 offset:%d" % (V_S+w, w*256))
        n = g.younger(g.ops_c, ["CAS"])
        A("  s_waitcnt vmcnt(%d)" % min(n, 63))
        A("  v_readfirstlane_b32 s60, v24")
        A("  v_readfirstlane_b32 s65, v26")
        A("  s_nop 3")
        A("  s_cmp_eq_u32 s60, 0")
        A("  s_cselect_b32 s65, s65, s60")
        A("  s_waitcnt lgkmcnt(0)")
        A("  v_add_f32 v%d, v%d, v%d" % (V_S, V_S, V_S+1))
        A("  v_add_f32 v%d, v%d, v%d" % (V_S+2, V_S+2, V_S+3))
        A("  v_add_f32 v%d, v%d, v%d" % (V_S, V_S, V_S+2))
        A("  v_mov_b32 v%d, s65" % (V_S+1))
        A("  v_lshlrev_b32 v22, 3, v0")
        A("  buffer_store_dwordx2 v[%d:%d], v22, s[40:43], s63 offen sc1" % (V_S, V_S+1))
        A("L_pub1:")
        g.op("PUB", 1, True)

    for s in range(16): stage(s)

    A("  s_waitcnt lgkmcnt(0)")
    A("  s_nop 15")
    O = V_T
    for rh in range(2):
        for vp in range(8):
            for t in range(6):
                d = O + 2*t; x = acc(rh, t) + 2*vp; p = V_S + rh*16 + 2*vp
                if rh == 0 and vp == 0:
                    A("  v_pk_mul_f32 v[%d:%d], v[%d:%d], v[%d:%d]" % (d, d+1, x, x+1, p, p+1))
                else:
                    A("  v_pk_fma_f32 v[%d:%d], v[%d:%d], v[%d:%d], v[%d:%d]" % (d, d+1, x, x+1, p, p+1, d, d+1))
    for t in range(6):
        A("  v_add_f32 v%d, v%d, v%d" % (O+2*t, O+2*t, O+2*t+1))
    A("  s_nop 1")
    for i in range(3):
        A("  v_permlane32_swap_b32 v%d, v%d" % (O+2*i, O+2*(i+3)))
    for i in range(3):
        A("  v_add_f32 v%d, v%d, v%d" % (O+2*i, O+2*i, O+2*(i+3)))
    A("  v_lshrrev_b32 v30, 5, v0")
    A("  v_mul_u32_u24 v30, 384, v30")
    A("  v_and_b32 v31, 31, v0")
    A("  v_lshl_add_u32 v30, v31, 2, v30")
    A("  s_mul_i32 s60, s3, 768")
    A("  s_add_u32 s60, s60, %d" % SCR_O)
    A("  v_add_u32 v30, s60, v30")
    for i in range(3):
        A("  ds_write_b32 v30, v%d offset:%d" % (O+2*i, i*128))
    A("  s_waitcnt lgkmcnt(0)")
    A("  s_barrier")
    A("  s_cmp_eq_u32 s3, 0")
    A("  s_cbranch_scc0 L_fin")
    A("  v_lshlrev_b32 v22, 4, v0")
    A("  v_min_u32 v23, 752, v22")
    A("  v_add_u32 v23, %d, v23" % SCR_O)
    for w in range(4):
        A("  ds_read_b128 v[%d:%d], v23 offset:%d" % (V_S+4*w, V_S+4*w+3, w*768))
    A("  s_waitcnt lgkmcnt(0)")
    for i in range(4):
        A("  v_add_f32 v%d, v%d, v%d" % (V_S+i, V_S+i, V_S+4+i))
        A("  v_add_f32 v%d, v%d, v%d" % (V_S+8+i, V_S+8+i, V_S+12+i))
    for i in range(4):
        A("  v_add_f32 v%d, v%d, v%d" % (V_S+i, V_S+i, V_S+8+i))
    A("  s_mov_b32 exec_lo, -1\n  s_mov_b32 exec_hi, 0xffff")
    A("  s_cmp_eq_u32 s61, 0")
    A("  s_cbranch_scc1 L_cons")
    for i in range(4):
        A("  v_and_b32 v%d, -2, v%d" % (V_S+i, V_S+i))
    A("  buffer_store_dwordx4 v[%d:%d], v22, s[40:43], s64 offen sc1" % (V_S, V_S+3))
    A("  s_branch L_fin")
    A("L_cons:")
    A("  s_mov_b32 s66, 0")
    A("L_poll:")
    for c in range(1, 8):
        A("  buffer_load_dwordx4 v[%d:%d], v22, s[40:43], s64 offen offset:%d sc1" % (ACC+4*c, ACC+4*c+3, 0) if False else
          "  s_add_u32 s60, s64, %d\n  buffer_load_dwordx4 v[%d:%d], v22, s[40:43], s60 offen sc1" % (c*768, ACC+4*c, ACC+4*c+3))
    A("  s_waitcnt vmcnt(0)")
    A("  v_or3_b32 v20, v%d, v%d, v%d" % (ACC+4, ACC+5, ACC+6))
    regs = list(range(ACC+7, ACC+32))
    while len(regs) >= 2:
        A("  v_or3_b32 v20, v20, v%d, v%d" % (regs[0], regs[1])); regs = regs[2:]
    if regs: A("  v_or_b32 v20, v20, v%d" % regs[0])
    A("  v_and_b32 v20, 1, v20")
    A("  v_cmp_ne_u32 vcc, 0, v20")
    A("  s_nop 4")
    A("  s_cbranch_vccz L_got")
    A("  s_add_u32 s66, s66, 1")
    A("  s_cmp_lt_u32 s66, %d" % a.spin)
    A("  s_cbranch_scc1 L_poll")
    A("L_got:")
    for c in range(1, 8):
        for i in range(4):
            A("  v_add_f32 v%d, v%d, v%d" % (V_S+i, V_S+i, ACC+4*c+i))
    A("  v_cvt_pk_bf16_f32 v%d, v%d, v%d" % (V_S+4, V_S, V_S+1))
    A("  v_cvt_pk_bf16_f32 v%d, v%d, v%d" % (V_S+5, V_S+2, V_S+3))
    A("  v_lshlrev_b32 v22, 3, v0")
    A("  s_mul_i32 s60, s62, 384")
    A("  buffer_store_dwordx2 v[%d:%d], v22, s[44:47], s60 offen" % (V_S+4, V_S+5))
    A("L_fin:")
    if a.stamps:
        A("  s_mov_b64 exec, -1")
        A("  s_memrealtime s[88:89]")
        A("  s_getreg_b32 s90, hwreg(HW_REG_XCC_ID)")
        A("  s_waitcnt lgkmcnt(0)")
        A("  s_lshl_b32 s21, s2, 2\n  s_add_u32 s21, s21, s3\n  s_lshl_b32 s21, s21, 7\n  s_add_u32 s21, s21, 0x8000000")
        A("  s_add_u32 s38, s38, s21\n  s_addc_u32 s39, s39, 0")
        A("  v_mov_b32 v4, s70\n  v_writelane_b32 v4, s90, 1\n  v_writelane_b32 v4, 9, 3")
        for k in range(8): A("  v_writelane_b32 v4, s%d, %d" % (72+2*k, 4+k))
        A("  v_writelane_b32 v4, s88, 12")
        A("  v_writelane_b32 v4, s66, 13")
        A("  v_lshlrev_b32 v8, 2, v0\n  s_mov_b64 exec, 0xffffffff\n  global_store_dword v8, v4, s[38:39]")
    A("L_end:\n  s_endpgm")
    A(""".section .rodata,"a"
.p2align 6
.amdhsa_kernel %s
  .amdhsa_next_free_vgpr 288
  .amdhsa_next_free_sgpr 96
  .amdhsa_accum_offset 256
  .amdhsa_group_segment_fixed_size 0
  .amdhsa_kernarg_size 64
  .amdhsa_user_sgpr_count 2
  .amdhsa_user_sgpr_kernarg_segment_ptr 1
  .amdhsa_system_sgpr_workgroup_id_x 1
.end_amdhsa_kernel""" % KNAME)
    return "\n".join(g.L) + "\n"

import struct
def f32bits(x): return struct.unpack("<I", struct.pack("<f", x))[0]

if __name__ == "__main__":
    ap = argparse.ArgumentParser()
    ap.add_argument("-o", default="out.s")
    ap.add_argument("--ring", type=int, default=3)
    ap.add_argument("--nt", type=int, default=1)
    ap.add_argument("--stamps", type=int, default=0)
    ap.add_argument("--ld_stage", type=int, default=11)
    ap.add_argument("--chk_stage", type=int, default=14)
    ap.add_argument("--bar2_stage", type=int, default=14)
    ap.add_argument("--spin", type=int, default=200000)
    a = ap.parse_args()
    open(a.o, "w").write(gen(a))
```

```python
import argparse

KNAME = "standalone__low_rank_proj_linformer__decode_kernel"

class Gen:
    def __init__(s, a):
        s.a = a
        s.L = []
        s.ops_c = []
        s.ops_o = []
        s.nlab = 0
    def A(s, x): s.L.append(x)
    def op(s, label, n=1, ctrl_only=False):
        s.ops_c += [label]*n
        if not ctrl_only: s.ops_o += [label]*n
    @staticmethod
    def younger(ops, labels):
        last = -1
        for i, o in enumerate(ops):
            if o in labels: last = i
        if last < 0: return None
        return len(ops)-1-last
    def wait_vm(s, *labels):
        nc = s.younger(s.ops_c, labels); no = s.younger(s.ops_o, labels)
        if nc is None: nc = 63
        if no is None: no = 63
        nc = min(nc, 63); no = min(no, 63)
        if nc == no:
            s.A("  s_waitcnt vmcnt(%d)" % nc)
        else:
            assert nc > no
            s.nlab += 1
            s.A("  s_waitcnt vmcnt(%d)" % nc)
            s.A("  s_cmp_eq_u32 s3, 0")
            s.A("  s_cbranch_scc1 L_w%d" % s.nlab)
            s.A("  s_waitcnt vmcnt(%d)" % no)
            s.A("L_w%d:" % s.nlab)

WAVE_LDS = 34816
RING = 16384
STAGE = 6144
SCR = 4*WAVE_LDS
SCR_S = SCR
SCR_P = SCR + 1024
SCR_O = SCR + 1280
LDS_TOTAL = SCR_O + 3072
WS_S = 0
WS_O = 131072
WS_BYTES = WS_O + 256*768
V_KV = 1
V_E = 4
V_TR = 6
V_EA = 8
V_Q = 12
V_T = 18
V_S = 32
ACC = 64
def acc(rh, t): return ACC + (rh*6+t)*16

def gen(a):
    g = Gen(a); A = g.A
    NT = " nt" if a.nt else ""
    for l in open("standalone__low_rank_proj_linformer__decode.s.ref").read().split("\n"):
        if l.startswith("; @launch") or not l.startswith(";"): break
        if l.startswith("; Override") or l.startswith("; grid=ceil"): continue
        A(l)
    A("; @launch grid=(256,1,1) block=(256,1,1) lds=%d" % LDS_TOTAL)
    A('.amdgcn_target "amdgcn-amd-amdhsa--gfx950"')
    A(".text\n.globl %s\n.p2align 8\n.type %s,@function\n%s:" % (KNAME, KNAME, KNAME))
    A("  s_cmp_ge_u32 s2, 256")
    A("  s_cbranch_scc1 L_end")
    A("  s_load_dwordx16 s[24:39], s[0:1], 0")
    if a.stamps or a.dbgstats: A("  s_memrealtime s[70:71]")
    A("  v_lshrrev_b32 v18, 6, v0")
    A("  v_and_b32 v0, 63, v0")
    A("  v_readfirstlane_b32 s3, v18")
    A("  v_lshlrev_b32 v19, 4, v0")
    A("  s_movk_i32 s60, 2731")
    for j in range(3):
        A("  v_add_u32 v20, %d, v0" % (j*64))
        A("  v_mul_u32_u24 v20, s60, v20")
        A("  v_lshrrev_b32 v20, 16, v20")
        A("  v_and_b32 v20, 2, v20")
        A("  v_lshlrev_b32 v20, 5, v20")
        A("  v_xor_b32 v%d, v19, v20" % (V_KV+j))
    A("  s_lshl_b32 s56, s2, 2")
    A("  s_add_u32 s56, s56, s3")
    A("  s_mul_i32 s56, s56, 49152")
    A("  s_mul_i32 s58, s3, %d" % WAVE_LDS)
    A("  s_and_b32 s61, s2, 7")
    A("  s_lshr_b32 s62, s2, 3")
    A("  s_lshl_b32 s59, s61, 10")
    A("  s_lshl_b32 s60, s3, 8")
    A("  s_add_u32 s59, s59, s60")
    A("  s_mov_b32 s10, 50331648\n  s_mov_b32 s11, 0x20000")
    A("  s_mov_b32 s14, 50331648\n  s_mov_b32 s15, 0x20000")
    A("  s_mov_b32 s18, 524288\n  s_mov_b32 s19, 0x20000")
    A("  s_mov_b32 s22, 524288\n  s_mov_b32 s23, 0x20000")
    A("  v_lshrrev_b32 v20, 3, v0")
    A("  v_lshlrev_b32 v20, 13, v20")
    A("  v_lshrrev_b32 v21, 4, v0")
    A("  v_and_b32 v22, 7, v0")
    A("  v_xor_b32 v22, v22, v21")
    A("  v_lshl_add_u32 v%d, v22, 4, v20" % V_E)
    A("  v_xor_b32 v%d, 64, v%d" % (V_E+1, V_E))
    A("  s_waitcnt lgkmcnt(0)")
    A("  s_mov_b32 s8, s26\n  s_mov_b32 s9, s27")
    A("  s_mov_b32 s16, s30\n  s_mov_b32 s17, s31")

    def dma_kv(stage):
        srd = "s[8:11]" if stage < 8 else "s[12:15]"
        kt = stage % 8; slot = stage % a.ring
        for half in range(2):
            A("  s_add_u32 m0, s58, %d" % (RING + slot*STAGE + half*3072))
            A("  s_add_u32 s57, s56, %d" % (kt*STAGE + half*3072))
            for j in range(3):
                A("  buffer_load_dwordx4 v%d, %s, s57 offen offset:%d%s lds" % (V_KV+j, srd, j*1024, NT))
        g.op("S%d" % stage, 6)
    def dma_e(which, hh):
        srd = "s[16:19]" if which == 'E' else "s[20:23]"
        for i in range(8):
            if i % 4 == 0:
                A("  s_add_u32 m0, s58, %d" % (hh*8192 + i*1024))
            A("  s_add_u32 s57, s59, %d" % (hh*128 + i*65536 - (i & 3)*1024))
            A("  buffer_load_dwordx4 v%d, %s, s57 offen offset:%d lds" % (V_E + (i & 1), srd, (i & 3)*1024))
        g.op("%s%d" % (which, hh), 8)

    dma_kv(0)
    dma_e('E', 0)
    A("  s_mov_b32 s12, s28\n  s_mov_b32 s13, s29")
    A("  s_mov_b32 s20, s32\n  s_mov_b32 s21, s33")
    dma_kv(1)
    A("  s_mov_b32 s40, s38\n  s_mov_b32 s41, s39\n  s_mov_b32 s42, %d\n  s_mov_b32 s43, 0x20000" % WS_BYTES)
    A("  s_mov_b32 s44, s34\n  s_mov_b32 s45, s35\n  s_mov_b32 s46, 12288\n  s_mov_b32 s47, 0x20000")
    A("  s_mov_b32 s48, s36\n  s_mov_b32 s49, s37\n  s_mov_b32 s50, 256\n  s_mov_b32 s51, 0x20000")
    A("  s_mov_b32 s52, s24\n  s_mov_b32 s53, s25\n  s_mov_b32 s54, 12288\n  s_mov_b32 s55, 0x20000")
    A("  v_and_b32 v20, 31, v0")
    A("  v_lshlrev_b32 v21, 1, v20")
    A("  s_mul_i32 s60, s62, 384")
    for t in range(6): A("  v_mov_b32 v%d, 0" % (V_Q+t))
    for t in range(6):
        A("  buffer_load_short_d16_hi v%d, v21, s[52:55], s60 offen offset:%d" % (V_Q+t, t*64))
    g.op("Q", 6)
    dma_kv(2)
    dma_e('E', 1)
    A("  s_cmp_eq_u32 s3, 0")
    A("  s_cbranch_scc0 L_pro1")
    A("  s_lshl_b32 s63, s2, 9")
    A("  s_mul_i32 s64, s2, 768")
    A("  s_add_u32 s64, s64, %d" % WS_O)
    A("  v_mov_b32 v22, 4")
    A("  buffer_load_dword v23, v22, s[40:43], s63 offen sc1")
    A("  v_mov_b32 v24, -1\n  v_mov_b32 v25, -1\n  v_mov_b32 v26, -1\n  v_mov_b32 v27, -1")
    A("  v_lshlrev_b32 v22, 4, v0")
    A("  s_mov_b32 exec_lo, -1\n  s_mov_b32 exec_hi, 0xffff")
    A("  buffer_store_dwordx4 v[24:27], v22, s[40:43], s64 offen sc1")
    A("  s_mov_b64 exec, -1")
    A("L_pro1:")
    g.op("TAG", 1, True); g.op("CLR", 1, True)
    A("  v_lshrrev_b32 v20, 5, v0")
    A("  v_lshlrev_b32 v20, 3, v20")
    A("  v_bfe_u32 v21, v0, 2, 2")
    A("  v_add_u32 v20, v20, v21")
    A("  v_mul_u32_u24 v20, 384, v20")
    A("  v_bfe_u32 v21, v0, 4, 1")
    A("  v_lshl_add_u32 v20, v21, 5, v20")
    A("  v_and_b32 v21, 3, v0")
    A("  v_lshl_add_u32 v20, v21, 3, v20")
    A("  s_add_u32 s60, s58, %d" % RING)
    A("  v_add_u32 v20, s60, v20")
    A("  v_bfe_u32 v21, v0, 3, 1")
    A("  v_lshlrev_b32 v21, 6, v21")
    A("  v_add_u32 v%d, v20, v21" % V_TR)
    A("  v_sub_u32 v%d, v20, v21" % (V_TR+1))
    A("  v_and_b32 v20, 31, v0")
    A("  v_bfe_u32 v21, v0, 1, 3")
    A("  v_lshrrev_b32 v22, 5, v0")
    A("  v_xor_b32 v21, v21, v22")
    A("  v_lshlrev_b32 v21, 4, v21")
    A("  v_lshl_add_u32 v20, v20, 7, v21")
    A("  v_add_u32 v%d, s58, v20" % V_EA)
    for ks in range(1, 4):
        A("  v_xor_b32 v%d, %d, v%d" % (V_EA+ks, ks*32, V_EA))

    def stage(s):
        slot = s % a.ring; base = slot*STAGE
        ksl = s % 8; hh = ksl >> 2; ks = ksl & 3
        need = ["S%d" % s]
        if ksl == 0: need.append(("E0" if s < 8 else "F0"))
        if ksl == 4: need.append(("E1" if s < 8 else "F1"))
        g.wait_vm(*need)
        if (a.stamps or a.dbgstats) and s % 2 == 1: A("  s_memrealtime s[%d:%d]" % (72+2*(s//2), 73+2*(s//2)))
        pre_hooks(s)
        A("  ds_read_b128 a[24:27], v%d offset:%d" % (V_EA+ks, hh*8192))
        A("  ds_read_b128 a[28:31], v%d offset:%d" % (V_EA+ks, hh*8192+4096))
        for t in range(6):
            va = V_TR + (t & 1)
            A("  ds_read_b64_tr_b16 a[%d:%d], v%d offset:%d" % (4*t, 4*t+1, va, base + t*64))
            A("  ds_read_b64_tr_b16 a[%d:%d], v%d offset:%d" % (4*t+2, 4*t+3, va, base + t*64 + 1536))
        for t in range(6):
            A("  s_waitcnt lgkmcnt(%d)" % (2*(5-t)))
            if t == 5:
                mid_hooks(s)
                if s + a.ring < 16: dma_kv(s + a.ring)
                if s == 3: dma_e('F', 0)
                if s == 7: dma_e('F', 1)
            for rh in range(2):
                c = "0" if ksl == 0 else "v[%d:%d]" % (acc(rh, t), acc(rh, t)+15)
                A("  v_mfma_f32_32x32x16_bf16 v[%d:%d], a[%d:%d], a[%d:%d], %s" % (acc(rh, t), acc(rh, t)+15, 24+4*rh, 27+4*rh, 4*t, 4*t+3, c))
        post_hooks(s)

    def pre_hooks(s):
        if s == 0:
            A("  s_cmp_eq_u32 s3, 0")
            A("  s_cbranch_scc0 L_n1")
            g.nlab += 1
            n = g.younger(g.ops_c, ["TAG"])
            A("  s_waitcnt vmcnt(%d)" % n)
            A("  s_mov_b32 s60, 0x9E3779B1")
            A("  v_mul_lo_u32 v23, v23, s60")
            A("  v_add_u32 v23, 0x632BE5AB, v23")
            A("  v_or_b32 v24, 1, v23")
            A("  v_mov_b32 v25, 0")
            A("  s_lshl_b32 s60, s62, 2")
            A("  s_add_u32 s60, s60, 128")
            A("  v_mov_b32 v22, s60")
            A("  v_mov_b32 v26, v24")
            A("  s_mov_b64 exec, 1")
            A("  buffer_atomic_cmpswap v[24:25], v22, s[48:51], 0 offen sc0")
            A("  s_mov_b64 exec, -1")
            A("L_n1:")
            g.op("CAS", 1, True)
        if s == a.chk_stage:
            softmax()

    def mid_hooks(s):
        if s == a.ld_stage:
            A("  s_cmp_eq_u32 s3, 0")
            A("  s_cbranch_scc0 L_ld1")
            score_loads()
            A("L_ld1:")
            g.op("SC", 8, True)

    def score_loads():
        A("  s_and_b32 s60, s2, 0xf8")
        A("  s_lshl_b32 s60, s60, 9")
        A("  v_lshlrev_b32 v22, 3, v0")
        for c in range(8):
            A("  buffer_load_dwordx2 v[%d:%d], v22, s[40:43], s60 offen offset:%d sc1" % (V_S+2*c, V_S+2*c+1, c*512))

    def softmax():
        A("  s_cmp_eq_u32 s3, 0")
        A("  s_cbranch_scc0 L_sm_done")
        n = g.younger(g.ops_c, ["SC"])
        A("  s_waitcnt vmcnt(%d)" % n)
        A("  s_mov_b32 s66, 0")
        A("L_sm_chk:")
        A("  v_cmp_ne_u32 vcc, s65, v%d" % (V_S+1))
        for c in range(1, 8):
            A("  v_cmp_ne_u32 s[68:69], s65, v%d" % (V_S+2*c+1))
            A("  s_or_b64 vcc, vcc, s[68:69]")
        A("  s_nop 4")
        A("  s_cbranch_vccz L_sm_ok")
        A("  s_add_u32 s66, s66, 1")
        A("  s_cmp_ge_u32 s66, %d" % a.spin)
        A("  s_cbranch_scc1 L_sm_ok")
        score_loads()
        A("  s_waitcnt vmcnt(0)")
        A("  s_branch L_sm_chk")
        A("L_sm_ok:")
        A("  v_add_f32 v20, v%d, v%d" % (V_S, V_S+2))
        for c in range(2, 8):
            A("  v_add_f32 v20, v20, v%d" % (V_S+2*c))
        A("  v_mul_f32 v20, 0x%08x, v20" % f32bits(192**-0.5 * 1.4426950408889634))
        A("  v_mov_b32 v21, v20")
        for sh in (8, 4, 2, 1):
            A("  s_nop 1")
            A("  v_max_f32_dpp v21, v21, v21 row_ror:%d row_mask:0xf bank_mask:0xf" % sh)
        A("  v_mov_b32 v22, v21")
        A("  s_nop 1")
        A("  v_permlane16_swap_b32 v21, v22")
        A("  v_max_f32 v21, v21, v22")
        A("  v_mov_b32 v22, v21")
        A("  s_nop 1")
        A("  v_permlane32_swap_b32 v21, v22")
        A("  v_max_f32 v21, v21, v22")
        A("  v_sub_f32 v20, v20, v21")
        A("  v_exp_f32 v20, v20")
        A("  s_nop 0")
        A("  v_mov_b32 v21, v20")
        for sh in (8, 4, 2, 1):
            A("  s_nop 1")
            A("  v_add_f32_dpp v21, v21, v21 row_ror:%d row_mask:0xf bank_mask:0xf" % sh)
        A("  v_mov_b32 v22, v21")
        A("  s_nop 1")
        A("  v_permlane16_swap_b32 v21, v22")
        A("  v_add_f32 v21, v21, v22")
        A("  v_mov_b32 v22, v21")
        A("  s_nop 1")
        A("  v_permlane32_swap_b32 v21, v22")
        A("  v_add_f32 v21, v21, v22")
        A("  v_rcp_f32 v21, v21")
        A("  s_nop 0")
        A("  v_mul_f32 v20, v20, v21")
        A("  v_lshlrev_b32 v22, 2, v0")
        A("  v_add_u32 v22, %d, v22" % SCR_P)
        A("  ds_write_b32 v22, v20")
        A("  s_waitcnt lgkmcnt(0)")
        A("L_sm_done:")

    def post_hooks(s):
        if s == 7: k_epilogue()
        if s == a.bar2_stage:
            A("  s_barrier")
            A("  v_lshrrev_b32 v20, 5, v0")
            A("  v_lshlrev_b32 v20, 4, v20")
            A("  v_add_u32 v20, %d, v20" % SCR_P)
            for rh in range(2):
                for vq in range(4):
                    A("  ds_read_b128 v[%d:%d], v20 offset:%d" % (V_S+rh*16+vq*4, V_S+rh*16+vq*4+3, (32*rh+8*vq)*4))

    def k_epilogue():
        g.wait_vm("Q")
        A("  s_nop 15")
        for t in range(6):
            for rh in range(2):
                for vp in range(8):
                    d = V_S + rh*16 + 2*vp; x = acc(rh, t) + 2*vp
                    qreg = V_Q + t
                    qp = qreg & ~1; sel = qreg & 1
                    if t == 0:
                        A("  v_pk_mul_f32 v[%d:%d], v[%d:%d], v[%d:%d] op_sel:[0,%d] op_sel_hi:[1,%d]" % (d, d+1, x, x+1, qp, qp+1, sel, sel))
                    else:
                        A("  v_pk_fma_f32 v[%d:%d], v[%d:%d], v[%d:%d], v[%d:%d] op_sel:[0,%d,0] op_sel_hi:[1,%d,1]" % (d, d+1, x, x+1, qp, qp+1, d, d+1, sel, sel))
        A("  s_nop 1")
        for v in range(16):
            A("  v_permlane16_swap_b32 v%d, v%d" % (V_S+v, V_S+16+v))
        for v in range(16):
            A("  v_add_f32 v%d, v%d, v%d" % (V_S+v, V_S+v, V_S+16+v))
        A("  s_nop 1")
        for v in range(8):
            A("  v_add_f32_dpp v%d, v%d, v%d row_ror:8 row_mask:0xf bank_mask:0x3" % (V_S+v, V_S+v, V_S+v))
        for v in range(8):
            A("  v_add_f32_dpp v%d, v%d, v%d row_ror:8 row_mask:0xf bank_mask:0xc" % (V_S+v, V_S+8+v, V_S+8+v))
        A("  s_nop 1")
        for v in range(4):
            A("  v_add_f32_dpp v%d, v%d, v%d row_half_mirror row_mask:0xf bank_mask:0x5" % (V_S+v, V_S+v, V_S+v))
        for v in range(4):
            A("  v_add_f32_dpp v%d, v%d, v%d row_half_mirror row_mask:0xf bank_mask:0xa" % (V_S+v, V_S+4+v, V_S+4+v))
        A("  s_nop 1")
        for v in range(4):
            A("  v_add_f32_dpp v%d, v%d, v%d quad_perm:[1,0,3,2] row_mask:0xf bank_mask:0xf" % (V_S+v, V_S+v, V_S+v))
        A("  s_nop 1")
        for v in range(4):
            A("  v_add_f32_dpp v%d, v%d, v%d quad_perm:[2,3,0,1] row_mask:0xf bank_mask:0xf" % (V_S+v, V_S+v, V_S+v))
        A("  v_bfe_u32 v20, v0, 2, 3")
        A("  v_lshlrev_b32 v20, 5, v20")
        A("  v_lshrrev_b32 v21, 5, v0")
        A("  v_lshl_add_u32 v20, v21, 4, v20")
        A("  s_lshl_b32 s60, s3, 8")
        A("  s_add_u32 s60, s60, %d" % SCR_S)
        A("  v_add_u32 v20, s60, v20")
        A("  s_mov_b32 exec_lo, 0x11111111\n  s_mov_b32 exec_hi, 0x11111111")
        A("  ds_write_b128 v20, v[%d:%d]" % (V_S, V_S+3))
        A("  s_mov_b64 exec, -1")
        A("  s_waitcnt lgkmcnt(0)")
        A("  s_barrier")
        A("  s_cmp_eq_u32 s3, 0")
        A("  s_cbranch_scc0 L_pub1")
        A("  v_lshlrev_b32 v20, 2, v0")
        A("  v_add_u32 v20, %d, v20" % SCR_S)
        for w in range(4):
            A("  ds_read_b32 v%d, v20 offset:%d" % (V_S+w, w*256))
        n = g.younger(g.ops_c, ["CAS"])
        A("  s_waitcnt vmcnt(%d)" % min(n, 63))
        A("  v_readfirstlane_b32 s60, v24")
        A("  v_readfirstlane_b32 s65, v26")
        A("  s_nop 3")
        A("  s_cmp_eq_u32 s60, 0")
        A("  s_cselect_b32 s65, s65, s60")
        A("  s_waitcnt lgkmcnt(0)")
        A("  v_add_f32 v%d, v%d, v%d" % (V_S, V_S, V_S+1))
        A("  v_add_f32 v%d, v%d, v%d" % (V_S+2, V_S+2, V_S+3))
        A("  v_add_f32 v%d, v%d, v%d" % (V_S, V_S, V_S+2))
        A("  v_mov_b32 v%d, s65" % (V_S+1))
        A("  v_lshlrev_b32 v22, 3, v0")
        A("  buffer_store_dwordx2 v[%d:%d], v22, s[40:43], s63 offen sc1" % (V_S, V_S+1))
        A("L_pub1:")
        g.op("PUB", 1, True)

    for s in range(16): stage(s)

    A("  s_waitcnt lgkmcnt(0)")
    A("  s_nop 15")
    O = V_T
    for rh in range(2):
        for vp in range(8):
            for t in range(6):
                d = O + 2*t; x = acc(rh, t) + 2*vp; p = V_S + rh*16 + 2*vp
                if rh == 0 and vp == 0:
                    A("  v_pk_mul_f32 v[%d:%d], v[%d:%d], v[%d:%d]" % (d, d+1, x, x+1, p, p+1))
                else:
                    A("  v_pk_fma_f32 v[%d:%d], v[%d:%d], v[%d:%d], v[%d:%d]" % (d, d+1, x, x+1, p, p+1, d, d+1))
    for t in range(6):
        A("  v_add_f32 v%d, v%d, v%d" % (O+2*t, O+2*t, O+2*t+1))
    A("  s_nop 1")
    for i in range(3):
        A("  v_permlane32_swap_b32 v%d, v%d" % (O+2*i, O+2*(i+3)))
    for i in range(3):
        A("  v_add_f32 v%d, v%d, v%d" % (O+2*i, O+2*i, O+2*(i+3)))
    A("  v_lshrrev_b32 v30, 5, v0")
    A("  v_mul_u32_u24 v30, 384, v30")
    A("  v_and_b32 v31, 31, v0")
    A("  v_lshl_add_u32 v30, v31, 2, v30")
    A("  s_mul_i32 s60, s3, 768")
    A("  s_add_u32 s60, s60, %d" % SCR_O)
    A("  v_add_u32 v30, s60, v30")
    for i in range(3):
        A("  ds_write_b32 v30, v%d offset:%d" % (O+2*i, i*128))
    A("  s_waitcnt lgkmcnt(0)")
    A("  s_barrier")
    A("  s_cmp_eq_u32 s3, 0")
    A("  s_cbranch_scc0 L_fin")
    A("  v_lshlrev_b32 v22, 4, v0")
    A("  v_min_u32 v23, 752, v22")
    A("  v_add_u32 v23, %d, v23" % SCR_O)
    for w in range(4):
        A("  ds_read_b128 v[%d:%d], v23 offset:%d" % (V_S+4*w, V_S+4*w+3, w*768))
    A("  s_waitcnt lgkmcnt(0)")
    for i in range(4):
        A("  v_add_f32 v%d, v%d, v%d" % (V_S+i, V_S+i, V_S+4+i))
        A("  v_add_f32 v%d, v%d, v%d" % (V_S+8+i, V_S+8+i, V_S+12+i))
    for i in range(4):
        A("  v_add_f32 v%d, v%d, v%d" % (V_S+i, V_S+i, V_S+8+i))
    A("  s_mov_b32 exec_lo, -1\n  s_mov_b32 exec_hi, 0xffff")
    A("  s_cmp_eq_u32 s61, 0")
    A("  s_cbranch_scc1 L_cons")
    for i in range(4):
        A("  v_and_b32 v%d, -2, v%d" % (V_S+i, V_S+i))
    A("  buffer_store_dwordx4 v[%d:%d], v22, s[40:43], s64 offen sc1" % (V_S, V_S+3))
    A("  s_branch L_fin")
    A("L_cons:")
    A("  s_mov_b32 s66, 0")
    A("L_poll:")
    for c in range(1, 8):
        A("  buffer_load_dwordx4 v[%d:%d], v22, s[40:43], s64 offen offset:%d sc1" % (ACC+4*c, ACC+4*c+3, 0) if False else
          "  s_add_u32 s60, s64, %d\n  buffer_load_dwordx4 v[%d:%d], v22, s[40:43], s60 offen sc1" % (c*768, ACC+4*c, ACC+4*c+3))
    A("  s_waitcnt vmcnt(0)")
    A("  v_or3_b32 v20, v%d, v%d, v%d" % (ACC+4, ACC+5, ACC+6))
    regs = list(range(ACC+7, ACC+32))
    while len(regs) >= 2:
        A("  v_or3_b32 v20, v20, v%d, v%d" % (regs[0], regs[1])); regs = regs[2:]
    if regs: A("  v_or_b32 v20, v20, v%d" % regs[0])
    A("  v_and_b32 v20, 1, v20")
    A("  v_cmp_ne_u32 vcc, 0, v20")
    A("  s_nop 4")
    A("  s_cbranch_vccz L_got")
    A("  s_add_u32 s66, s66, 1")
    A("  s_cmp_lt_u32 s66, %d" % a.spin)
    A("  s_cbranch_scc1 L_poll")
    A("L_got:")
    for c in range(1, 8):
        for i in range(4):
            A("  v_add_f32 v%d, v%d, v%d" % (V_S+i, V_S+i, ACC+4*c+i))
    A("  v_cvt_pk_bf16_f32 v%d, v%d, v%d" % (V_S+4, V_S, V_S+1))
    A("  v_cvt_pk_bf16_f32 v%d, v%d, v%d" % (V_S+5, V_S+2, V_S+3))
    A("  v_lshlrev_b32 v22, 3, v0")
    A("  s_mul_i32 s60, s62, 384")
    A("  buffer_store_dwordx2 v[%d:%d], v22, s[44:47], s60 offen" % (V_S+4, V_S+5))
    A("L_fin:")
    if a.stamps:
        A("  s_mov_b64 exec, -1")
        A("  s_memrealtime s[88:89]")
        A("  s_getreg_b32 s90, hwreg(HW_REG_XCC_ID)")
        A("  s_waitcnt lgkmcnt(0)")
        A("  s_lshl_b32 s21, s2, 2\n  s_add_u32 s21, s21, s3\n  s_lshl_b32 s21, s21, 7\n  s_add_u32 s21, s21, 0x8000000")
        A("  s_add_u32 s38, s38, s21\n  s_addc_u32 s39, s39, 0")
        A("  v_mov_b32 v4, s70\n  v_writelane_b32 v4, s90, 1\n  v_writelane_b32 v4, 9, 3")
        for k in range(8): A("  v_writelane_b32 v4, s%d, %d" % (72+2*k, 4+k))
        A("  v_writelane_b32 v4, s88, 12")
        A("  v_writelane_b32 v4, s66, 13")
        A("  v_lshlrev_b32 v8, 2, v0\n  s_mov_b64 exec, 0xffffffff\n  global_store_dword v8, v4, s[38:39]")
    if a.dbgstats:
        A("  s_mov_b64 exec, -1")
        A("  s_memrealtime s[88:89]")
        A("  s_waitcnt lgkmcnt(0)")
        A("  s_not_b32 s70, s70")
        A("  v_mov_b32 v4, s88\n  v_writelane_b32 v4, s70, 1")
        for k in range(8): A("  v_writelane_b32 v4, s%d, %d" % (72+2*k, 2+k))
        A("  v_writelane_b32 v4, s66, 10")
        A("  v_lshlrev_b32 v8, 2, v0\n  s_mov_b64 exec, 0x7ff\n  buffer_atomic_umax v4, v8, s[48:51], 0 offen")
    A("L_end:\n  s_endpgm")
    A(""".section .rodata,"a"
.p2align 6
.amdhsa_kernel %s
  .amdhsa_next_free_vgpr 288
  .amdhsa_next_free_sgpr 96
  .amdhsa_accum_offset 256
  .amdhsa_group_segment_fixed_size 0
  .amdhsa_kernarg_size 64
  .amdhsa_user_sgpr_count 2
  .amdhsa_user_sgpr_kernarg_segment_ptr 1
  .amdhsa_system_sgpr_workgroup_id_x 1
.end_amdhsa_kernel""" % KNAME)
    return "\n".join(g.L) + "\n"

import struct
def f32bits(x): return struct.unpack("<I", struct.pack("<f", x))[0]

if __name__ == "__main__":
    ap = argparse.ArgumentParser()
    ap.add_argument("-o", default="out.s")
    ap.add_argument("--ring", type=int, default=3)
    ap.add_argument("--nt", type=int, default=1)
    ap.add_argument("--stamps", type=int, default=0)
    ap.add_argument("--dbgstats", type=int, default=0)
    ap.add_argument("--ld_stage", type=int, default=11)
    ap.add_argument("--chk_stage", type=int, default=14)
    ap.add_argument("--bar2_stage", type=int, default=14)
    ap.add_argument("--spin", type=int, default=200000)
    a = ap.parse_args()
    open(a.o, "w").write(gen(a))
```

```python
import argparse

KNAME = "standalone__low_rank_proj_linformer__decode_kernel"

class Gen:
    def __init__(s, a):
        s.a = a
        s.L = []
        s.ops_c = []
        s.ops_o = []
        s.nlab = 0
    def A(s, x): s.L.append(x)
    def op(s, label, n=1, ctrl_only=False):
        s.ops_c += [label]*n
        if not ctrl_only: s.ops_o += [label]*n
    @staticmethod
    def younger(ops, labels):
        last = -1
        for i, o in enumerate(ops):
            if o in labels: last = i
        if last < 0: return None
        return len(ops)-1-last
    def wait_vm(s, *labels):
        nc = s.younger(s.ops_c, labels); no = s.younger(s.ops_o, labels)
        if nc is None: nc = 63
        if no is None: no = 63
        nc = min(nc, 63); no = min(no, 63)
        if nc == no:
            s.A("  s_waitcnt vmcnt(%d)" % nc)
        else:
            assert nc > no
            s.nlab += 1
            s.A("  s_waitcnt vmcnt(%d)" % nc)
            s.A("  s_cmp_eq_u32 s3, 0")
            s.A("  s_cbranch_scc1 L_w%d" % s.nlab)
            s.A("  s_waitcnt vmcnt(%d)" % no)
            s.A("L_w%d:" % s.nlab)

WAVE_LDS = 34816
RING = 16384
STAGE = 6144
SCR = 4*WAVE_LDS
SCR_S = SCR
SCR_P = SCR + 1024
SCR_O = SCR + 1280
LDS_TOTAL = SCR_O + 3072
WS_S = 0
WS_O = 131072
WS_BYTES = WS_O + 256*768
V_KV = 1
V_E = 4
V_TR = 6
V_EA = 8
V_Q = 12
V_T = 18
V_S = 32
ACC = 64
def acc(rh, t): return ACC + (rh*6+t)*16

def gen(a):
    g = Gen(a); A = g.A
    POL = {0: "", 1: " nt", 2: " sc1", 3: " sc1 nt", 4: " sc0 sc1", 5: " sc0 sc1 nt", 6: " sc0 nt", 7: " sc0"}
    NTK = POL[a.nt if a.ntk < 0 else a.ntk]; NTV = POL[a.nt if a.ntv < 0 else a.ntv]
    for l in open("standalone__low_rank_proj_linformer__decode.s.ref").read().split("\n"):
        if l.startswith("; @launch") or not l.startswith(";"): break
        if l.startswith("; Override") or l.startswith("; grid=ceil"): continue
        A(l)
    A("; @launch grid=(256,1,1) block=(256,1,1) lds=%d" % LDS_TOTAL)
    A('.amdgcn_target "amdgcn-amd-amdhsa--gfx950"')
    A(".text\n.globl %s\n.p2align 8\n.type %s,@function\n%s:" % (KNAME, KNAME, KNAME))
    A("  s_cmp_ge_u32 s2, 256")
    A("  s_cbranch_scc1 L_end")
    A("  s_load_dwordx16 s[24:39], s[0:1], 0")
    if a.stamps or a.dbgstats: A("  s_memrealtime s[70:71]")
    A("  v_lshrrev_b32 v18, 6, v0")
    A("  v_and_b32 v0, 63, v0")
    A("  v_readfirstlane_b32 s3, v18")
    A("  v_lshlrev_b32 v19, 4, v0")
    A("  s_movk_i32 s60, 2731")
    for j in range(3):
        A("  v_add_u32 v20, %d, v0" % (j*64))
        A("  v_mul_u32_u24 v20, s60, v20")
        A("  v_lshrrev_b32 v20, 16, v20")
        A("  v_and_b32 v20, 2, v20")
        A("  v_lshlrev_b32 v20, 5, v20")
        A("  v_xor_b32 v%d, v19, v20" % (V_KV+j))
    A("  s_lshl_b32 s56, s2, 2")
    A("  s_add_u32 s56, s56, s3")
    A("  s_mul_i32 s56, s56, 49152")
    A("  s_mul_i32 s58, s3, %d" % WAVE_LDS)
    A("  s_and_b32 s61, s2, 7")
    A("  s_lshr_b32 s62, s2, 3")
    A("  s_lshl_b32 s59, s61, 10")
    A("  s_lshl_b32 s60, s3, 8")
    A("  s_add_u32 s59, s59, s60")
    A("  s_mov_b32 s10, 50331648\n  s_mov_b32 s11, 0x20000")
    A("  s_mov_b32 s14, 50331648\n  s_mov_b32 s15, 0x20000")
    A("  s_mov_b32 s18, 524288\n  s_mov_b32 s19, 0x20000")
    A("  s_mov_b32 s22, 524288\n  s_mov_b32 s23, 0x20000")
    A("  v_lshrrev_b32 v20, 3, v0")
    A("  v_lshlrev_b32 v20, 13, v20")
    A("  v_lshrrev_b32 v21, 4, v0")
    A("  v_and_b32 v22, 7, v0")
    A("  v_xor_b32 v22, v22, v21")
    A("  v_lshl_add_u32 v%d, v22, 4, v20" % V_E)
    A("  v_xor_b32 v%d, 64, v%d" % (V_E+1, V_E))
    A("  s_waitcnt lgkmcnt(0)")
    A("  s_mov_b32 s8, s26\n  s_mov_b32 s9, s27")
    A("  s_mov_b32 s16, s30\n  s_mov_b32 s17, s31")

    def dma_kv(stage):
        srd = "s[8:11]" if stage < 8 else "s[12:15]"
        NT = NTK if stage < 8 else NTV
        kt = stage % 8; slot = stage % a.ring
        for half in range(2):
            A("  s_add_u32 m0, s58, %d" % (RING + slot*STAGE + half*3072))
            A("  s_add_u32 s57, s56, %d" % (kt*STAGE + half*3072))
            for j in range(3):
                A("  buffer_load_dwordx4 v%d, %s, s57 offen offset:%d%s lds" % (V_KV+j, srd, j*1024, NT))
        g.op("S%d" % stage, 6)
    def dma_e(which, hh):
        srd = "s[16:19]" if which == 'E' else "s[20:23]"
        for i in range(8):
            if i % 4 == 0:
                A("  s_add_u32 m0, s58, %d" % (hh*8192 + i*1024))
            A("  s_add_u32 s57, s59, %d" % (hh*128 + i*65536 - (i & 3)*1024))
            A("  buffer_load_dwordx4 v%d, %s, s57 offen offset:%d lds" % (V_E + (i & 1), srd, (i & 3)*1024))
        g.op("%s%d" % (which, hh), 8)

    dma_kv(0)
    dma_e('E', 0)
    A("  s_mov_b32 s12, s28\n  s_mov_b32 s13, s29")
    A("  s_mov_b32 s20, s32\n  s_mov_b32 s21, s33")
    dma_kv(1)
    A("  s_mov_b32 s40, s38\n  s_mov_b32 s41, s39\n  s_mov_b32 s42, %d\n  s_mov_b32 s43, 0x20000" % WS_BYTES)
    A("  s_mov_b32 s44, s34\n  s_mov_b32 s45, s35\n  s_mov_b32 s46, 12288\n  s_mov_b32 s47, 0x20000")
    A("  s_mov_b32 s48, s36\n  s_mov_b32 s49, s37\n  s_mov_b32 s50, 256\n  s_mov_b32 s51, 0x20000")
    A("  s_mov_b32 s52, s24\n  s_mov_b32 s53, s25\n  s_mov_b32 s54, 12288\n  s_mov_b32 s55, 0x20000")
    A("  v_and_b32 v20, 31, v0")
    A("  v_lshlrev_b32 v21, 1, v20")
    A("  s_mul_i32 s60, s62, 384")
    for t in range(6): A("  v_mov_b32 v%d, 0" % (V_Q+t))
    for t in range(6):
        A("  buffer_load_short_d16_hi v%d, v21, s[52:55], s60 offen offset:%d" % (V_Q+t, t*64))
    g.op("Q", 6)
    dma_kv(2)
    dma_e('E', 1)
    A("  s_cmp_eq_u32 s3, 0")
    A("  s_cbranch_scc0 L_pro1")
    A("  s_lshl_b32 s63, s2, 9")
    A("  s_mul_i32 s64, s2, 768")
    A("  s_add_u32 s64, s64, %d" % WS_O)
    A("  v_mov_b32 v22, 4")
    A("  buffer_load_dword v23, v22, s[40:43], s63 offen sc1")
    A("  v_mov_b32 v24, -1\n  v_mov_b32 v25, -1\n  v_mov_b32 v26, -1\n  v_mov_b32 v27, -1")
    A("  v_lshlrev_b32 v22, 4, v0")
    A("  s_mov_b32 exec_lo, -1\n  s_mov_b32 exec_hi, 0xffff")
    A("  buffer_store_dwordx4 v[24:27], v22, s[40:43], s64 offen sc1")
    A("  s_mov_b64 exec, -1")
    A("L_pro1:")
    g.op("TAG", 1, True); g.op("CLR", 1, True)
    A("  v_lshrrev_b32 v20, 5, v0")
    A("  v_lshlrev_b32 v20, 3, v20")
    A("  v_bfe_u32 v21, v0, 2, 2")
    A("  v_add_u32 v20, v20, v21")
    A("  v_mul_u32_u24 v20, 384, v20")
    A("  v_bfe_u32 v21, v0, 4, 1")
    A("  v_lshl_add_u32 v20, v21, 5, v20")
    A("  v_and_b32 v21, 3, v0")
    A("  v_lshl_add_u32 v20, v21, 3, v20")
    A("  s_add_u32 s60, s58, %d" % RING)
    A("  v_add_u32 v20, s60, v20")
    A("  v_bfe_u32 v21, v0, 3, 1")
    A("  v_lshlrev_b32 v21, 6, v21")
    A("  v_add_u32 v%d, v20, v21" % V_TR)
    A("  v_sub_u32 v%d, v20, v21" % (V_TR+1))
    A("  v_and_b32 v20, 31, v0")
    A("  v_bfe_u32 v21, v0, 1, 3")
    A("  v_lshrrev_b32 v22, 5, v0")
    A("  v_xor_b32 v21, v21, v22")
    A("  v_lshlrev_b32 v21, 4, v21")
    A("  v_lshl_add_u32 v20, v20, 7, v21")
    A("  v_add_u32 v%d, s58, v20" % V_EA)
    for ks in range(1, 4):
        A("  v_xor_b32 v%d, %d, v%d" % (V_EA+ks, ks*32, V_EA))

    def stage(s):
        slot = s % a.ring; base = slot*STAGE
        ksl = s % 8; hh = ksl >> 2; ks = ksl & 3
        need = ["S%d" % s]
        if ksl == 0: need.append(("E0" if s < 8 else "F0"))
        if ksl == 4: need.append(("E1" if s < 8 else "F1"))
        g.wait_vm(*need)
        if (a.stamps or a.dbgstats) and s % 2 == 1: A("  s_memrealtime s[%d:%d]" % (72+2*(s//2), 73+2*(s//2)))
        pre_hooks(s)
        A("  ds_read_b128 a[24:27], v%d offset:%d" % (V_EA+ks, hh*8192))
        A("  ds_read_b128 a[28:31], v%d offset:%d" % (V_EA+ks, hh*8192+4096))
        for t in range(6):
            va = V_TR + (t & 1)
            A("  ds_read_b64_tr_b16 a[%d:%d], v%d offset:%d" % (4*t, 4*t+1, va, base + t*64))
            A("  ds_read_b64_tr_b16 a[%d:%d], v%d offset:%d" % (4*t+2, 4*t+3, va, base + t*64 + 1536))
        for t in range(6):
            A("  s_waitcnt lgkmcnt(%d)" % (2*(5-t)))
            if t == 5:
                mid_hooks(s)
                if s + a.ring < 16: dma_kv(s + a.ring)
                if s == 3: dma_e('F', 0)
                if s == 7: dma_e('F', 1)
            for rh in range(2):
                c = "0" if ksl == 0 else "v[%d:%d]" % (acc(rh, t), acc(rh, t)+15)
                A("  v_mfma_f32_32x32x16_bf16 v[%d:%d], a[%d:%d], a[%d:%d], %s" % (acc(rh, t), acc(rh, t)+15, 24+4*rh, 27+4*rh, 4*t, 4*t+3, c))
        post_hooks(s)

    def pre_hooks(s):
        if s == 0:
            A("  s_cmp_eq_u32 s3, 0")
            A("  s_cbranch_scc0 L_n1")
            g.nlab += 1
            n = g.younger(g.ops_c, ["TAG"])
            A("  s_waitcnt vmcnt(%d)" % n)
            A("  s_mov_b32 s60, 0x9E3779B1")
            A("  v_mul_lo_u32 v23, v23, s60")
            A("  v_add_u32 v23, 0x632BE5AB, v23")
            A("  v_or_b32 v24, 1, v23")
            A("  v_mov_b32 v25, 0")
            A("  s_lshl_b32 s60, s62, 2")
            A("  s_add_u32 s60, s60, 128")
            A("  v_mov_b32 v22, s60")
            A("  v_mov_b32 v26, v24")
            A("  s_mov_b64 exec, 1")
            A("  buffer_atomic_cmpswap v[24:25], v22, s[48:51], 0 offen sc0")
            A("  s_mov_b64 exec, -1")
            A("L_n1:")
            g.op("CAS", 1, True)
        if s == a.chk_stage:
            softmax()

    def mid_hooks(s):
        if s == a.ld_stage:
            A("  s_cmp_eq_u32 s3, 0")
            A("  s_cbranch_scc0 L_ld1")
            score_loads()
            A("L_ld1:")
            g.op("SC", 8, True)

    def score_loads():
        A("  s_and_b32 s60, s2, 0xf8")
        A("  s_lshl_b32 s60, s60, 9")
        A("  v_lshlrev_b32 v22, 3, v0")
        for c in range(8):
            A("  buffer_load_dwordx2 v[%d:%d], v22, s[40:43], s60 offen offset:%d sc1" % (V_S+2*c, V_S+2*c+1, c*512))

    def softmax():
        A("  s_cmp_eq_u32 s3, 0")
        A("  s_cbranch_scc0 L_sm_done")
        n = g.younger(g.ops_c, ["SC"])
        A("  s_waitcnt vmcnt(%d)" % n)
        A("  s_mov_b32 s66, 0")
        A("L_sm_chk:")
        A("  v_cmp_ne_u32 vcc, s65, v%d" % (V_S+1))
        for c in range(1, 8):
            A("  v_cmp_ne_u32 s[68:69], s65, v%d" % (V_S+2*c+1))
            A("  s_or_b64 vcc, vcc, s[68:69]")
        A("  s_nop 4")
        A("  s_cbranch_vccz L_sm_ok")
        A("  s_add_u32 s66, s66, 1")
        A("  s_cmp_ge_u32 s66, %d" % a.spin)
        A("  s_cbranch_scc1 L_sm_ok")
        score_loads()
        A("  s_waitcnt vmcnt(0)")
        A("  s_branch L_sm_chk")
        A("L_sm_ok:")
        A("  v_add_f32 v20, v%d, v%d" % (V_S, V_S+2))
        for c in range(2, 8):
            A("  v_add_f32 v20, v20, v%d" % (V_S+2*c))
        A("  v_mul_f32 v20, 0x%08x, v20" % f32bits(192**-0.5 * 1.4426950408889634))
        A("  v_mov_b32 v21, v20")
        for sh in (8, 4, 2, 1):
            A("  s_nop 1")
            A("  v_max_f32_dpp v21, v21, v21 row_ror:%d row_mask:0xf bank_mask:0xf" % sh)
        A("  v_mov_b32 v22, v21")
        A("  s_nop 1")
        A("  v_permlane16_swap_b32 v21, v22")
        A("  v_max_f32 v21, v21, v22")
        A("  v_mov_b32 v22, v21")
        A("  s_nop 1")
        A("  v_permlane32_swap_b32 v21, v22")
        A("  v_max_f32 v21, v21, v22")
        A("  v_sub_f32 v20, v20, v21")
        A("  v_exp_f32 v20, v20")
        A("  s_nop 0")
        A("  v_mov_b32 v21, v20")
        for sh in (8, 4, 2, 1):
            A("  s_nop 1")
            A("  v_add_f32_dpp v21, v21, v21 row_ror:%d row_mask:0xf bank_mask:0xf" % sh)
        A("  v_mov_b32 v22, v21")
        A("  s_nop 1")
        A("  v_permlane16_swap_b32 v21, v22")
        A("  v_add_f32 v21, v21, v22")
        A("  v_mov_b32 v22, v21")
        A("  s_nop 1")
        A("  v_permlane32_swap_b32 v21, v22")
        A("  v_add_f32 v21, v21, v22")
        A("  v_rcp_f32 v21, v21")
        A("  s_nop 0")
        A("  v_mul_f32 v20, v20, v21")
        A("  v_lshlrev_b32 v22, 2, v0")
        A("  v_add_u32 v22, %d, v22" % SCR_P)
        A("  ds_write_b32 v22, v20")
        A("  s_waitcnt lgkmcnt(0)")
        A("L_sm_done:")

    def post_hooks(s):
        if s == 7: k_epilogue()
        if s == a.bar2_stage:
            A("  s_barrier")
            A("  v_lshrrev_b32 v20, 5, v0")
            A("  v_lshlrev_b32 v20, 4, v20")
            A("  v_add_u32 v20, %d, v20" % SCR_P)
            for rh in range(2):
                for vq in range(4):
                    A("  ds_read_b128 v[%d:%d], v20 offset:%d" % (V_S+rh*16+vq*4, V_S+rh*16+vq*4+3, (32*rh+8*vq)*4))

    def k_epilogue():
        g.wait_vm("Q")
        A("  s_nop 15")
        for t in range(6):
            for rh in range(2):
                for vp in range(8):
                    d = V_S + rh*16 + 2*vp; x = acc(rh, t) + 2*vp
                    qreg = V_Q + t
                    qp = qreg & ~1; sel = qreg & 1
                    if t == 0:
                        A("  v_pk_mul_f32 v[%d:%d], v[%d:%d], v[%d:%d] op_sel:[0,%d] op_sel_hi:[1,%d]" % (d, d+1, x, x+1, qp, qp+1, sel, sel))
                    else:
                        A("  v_pk_fma_f32 v[%d:%d], v[%d:%d], v[%d:%d], v[%d:%d] op_sel:[0,%d,0] op_sel_hi:[1,%d,1]" % (d, d+1, x, x+1, qp, qp+1, d, d+1, sel, sel))
        A("  s_nop 1")
        for v in range(16):
            A("  v_permlane16_swap_b32 v%d, v%d" % (V_S+v, V_S+16+v))
        for v in range(16):
            A("  v_add_f32 v%d, v%d, v%d" % (V_S+v, V_S+v, V_S+16+v))
        A("  s_nop 1")
        for v in range(8):
            A("  v_add_f32_dpp v%d, v%d, v%d row_ror:8 row_mask:0xf bank_mask:0x3" % (V_S+v, V_S+v, V_S+v))
        for v in range(8):
            A("  v_add_f32_dpp v%d, v%d, v%d row_ror:8 row_mask:0xf bank_mask:0xc" % (V_S+v, V_S+8+v, V_S+8+v))
        A("  s_nop 1")
        for v in range(4):
            A("  v_add_f32_dpp v%d, v%d, v%d row_half_mirror row_mask:0xf bank_mask:0x5" % (V_S+v, V_S+v, V_S+v))
        for v in range(4):
            A("  v_add_f32_dpp v%d, v%d, v%d row_half_mirror row_mask:0xf bank_mask:0xa" % (V_S+v, V_S+4+v, V_S+4+v))
        A("  s_nop 1")
        for v in range(4):
            A("  v_add_f32_dpp v%d, v%d, v%d quad_perm:[1,0,3,2] row_mask:0xf bank_mask:0xf" % (V_S+v, V_S+v, V_S+v))
        A("  s_nop 1")
        for v in range(4):
            A("  v_add_f32_dpp v%d, v%d, v%d quad_perm:[2,3,0,1] row_mask:0xf bank_mask:0xf" % (V_S+v, V_S+v, V_S+v))
        A("  v_bfe_u32 v20, v0, 2, 3")
        A("  v_lshlrev_b32 v20, 5, v20")
        A("  v_lshrrev_b32 v21, 5, v0")
        A("  v_lshl_add_u32 v20, v21, 4, v20")
        A("  s_lshl_b32 s60, s3, 8")
        A("  s_add_u32 s60, s60, %d" % SCR_S)
        A("  v_add_u32 v20, s60, v20")
        A("  s_mov_b32 exec_lo, 0x11111111\n  s_mov_b32 exec_hi, 0x11111111")
        A("  ds_write_b128 v20, v[%d:%d]" % (V_S, V_S+3))
        A("  s_mov_b64 exec, -1")
        A("  s_waitcnt lgkmcnt(0)")
        A("  s_barrier")
        A("  s_cmp_eq_u32 s3, 0")
        A("  s_cbranch_scc0 L_pub1")
        A("  v_lshlrev_b32 v20, 2, v0")
        A("  v_add_u32 v20, %d, v20" % SCR_S)
        for w in range(4):
            A("  ds_read_b32 v%d, v20 offset:%d" % (V_S+w, w*256))
        n = g.younger(g.ops_c, ["CAS"])
        A("  s_waitcnt vmcnt(%d)" % min(n, 63))
        A("  v_readfirstlane_b32 s60, v24")
        A("  v_readfirstlane_b32 s65, v26")
        A("  s_nop 3")
        A("  s_cmp_eq_u32 s60, 0")
        A("  s_cselect_b32 s65, s65, s60")
        A("  s_waitcnt lgkmcnt(0)")
        A("  v_add_f32 v%d, v%d, v%d" % (V_S, V_S, V_S+1))
        A("  v_add_f32 v%d, v%d, v%d" % (V_S+2, V_S+2, V_S+3))
        A("  v_add_f32 v%d, v%d, v%d" % (V_S, V_S, V_S+2))
        A("  v_mov_b32 v%d, s65" % (V_S+1))
        A("  v_lshlrev_b32 v22, 3, v0")
        A("  buffer_store_dwordx2 v[%d:%d], v22, s[40:43], s63 offen sc1" % (V_S, V_S+1))
        A("L_pub1:")
        g.op("PUB", 1, True)

    for s in range(16): stage(s)

    A("  s_waitcnt lgkmcnt(0)")
    A("  s_nop 15")
    O = V_T
    for rh in range(2):
        for vp in range(8):
            for t in range(6):
                d = O + 2*t; x = acc(rh, t) + 2*vp; p = V_S + rh*16 + 2*vp
                if rh == 0 and vp == 0:
                    A("  v_pk_mul_f32 v[%d:%d], v[%d:%d], v[%d:%d]" % (d, d+1, x, x+1, p, p+1))
                else:
                    A("  v_pk_fma_f32 v[%d:%d], v[%d:%d], v[%d:%d], v[%d:%d]" % (d, d+1, x, x+1, p, p+1, d, d+1))
    for t in range(6):
        A("  v_add_f32 v%d, v%d, v%d" % (O+2*t, O+2*t, O+2*t+1))
    A("  s_nop 1")
    for i in range(3):
        A("  v_permlane32_swap_b32 v%d, v%d" % (O+2*i, O+2*(i+3)))
    for i in range(3):
        A("  v_add_f32 v%d, v%d, v%d" % (O+2*i, O+2*i, O+2*(i+3)))
    A("  v_lshrrev_b32 v30, 5, v0")
    A("  v_mul_u32_u24 v30, 384, v30")
    A("  v_and_b32 v31, 31, v0")
    A("  v_lshl_add_u32 v30, v31, 2, v30")
    A("  s_mul_i32 s60, s3, 768")
    A("  s_add_u32 s60, s60, %d" % SCR_O)
    A("  v_add_u32 v30, s60, v30")
    for i in range(3):
        A("  ds_write_b32 v30, v%d offset:%d" % (O+2*i, i*128))
    A("  s_waitcnt lgkmcnt(0)")
    A("  s_barrier")
    A("  s_cmp_eq_u32 s3, 0")
    A("  s_cbranch_scc0 L_fin")
    A("  v_lshlrev_b32 v22, 4, v0")
    A("  v_min_u32 v23, 752, v22")
    A("  v_add_u32 v23, %d, v23" % SCR_O)
    for w in range(4):
        A("  ds_read_b128 v[%d:%d], v23 offset:%d" % (V_S+4*w, V_S+4*w+3, w*768))
    A("  s_waitcnt lgkmcnt(0)")
    for i in range(4):
        A("  v_add_f32 v%d, v%d, v%d" % (V_S+i, V_S+i, V_S+4+i))
        A("  v_add_f32 v%d, v%d, v%d" % (V_S+8+i, V_S+8+i, V_S+12+i))
    for i in range(4):
        A("  v_add_f32 v%d, v%d, v%d" % (V_S+i, V_S+i, V_S+8+i))
    A("  s_mov_b32 exec_lo, -1\n  s_mov_b32 exec_hi, 0xffff")
    A("  s_cmp_eq_u32 s61, 0")
    A("  s_cbranch_scc1 L_cons")
    for i in range(4):
        A("  v_and_b32 v%d, -2, v%d" % (V_S+i, V_S+i))
    A("  buffer_store_dwordx4 v[%d:%d], v22, s[40:43], s64 offen sc1" % (V_S, V_S+3))
    A("  s_branch L_fin")
    A("L_cons:")
    A("  s_mov_b32 s66, 0")
    A("L_poll:")
    for c in range(1, 8):
        A("  buffer_load_dwordx4 v[%d:%d], v22, s[40:43], s64 offen offset:%d sc1" % (ACC+4*c, ACC+4*c+3, 0) if False else
          "  s_add_u32 s60, s64, %d\n  buffer_load_dwordx4 v[%d:%d], v22, s[40:43], s60 offen sc1" % (c*768, ACC+4*c, ACC+4*c+3))
    A("  s_waitcnt vmcnt(0)")
    A("  v_or3_b32 v20, v%d, v%d, v%d" % (ACC+4, ACC+5, ACC+6))
    regs = list(range(ACC+7, ACC+32))
    while len(regs) >= 2:
        A("  v_or3_b32 v20, v20, v%d, v%d" % (regs[0], regs[1])); regs = regs[2:]
    if regs: A("  v_or_b32 v20, v20, v%d" % regs[0])
    A("  v_and_b32 v20, 1, v20")
    A("  v_cmp_ne_u32 vcc, 0, v20")
    A("  s_nop 4")
    A("  s_cbranch_vccz L_got")
    A("  s_add_u32 s66, s66, 1")
    A("  s_cmp_lt_u32 s66, %d" % a.spin)
    A("  s_cbranch_scc1 L_poll")
    A("L_got:")
    for c in range(1, 8):
        for i in range(4):
            A("  v_add_f32 v%d, v%d, v%d" % (V_S+i, V_S+i, ACC+4*c+i))
    A("  v_cvt_pk_bf16_f32 v%d, v%d, v%d" % (V_S+4, V_S, V_S+1))
    A("  v_cvt_pk_bf16_f32 v%d, v%d, v%d" % (V_S+5, V_S+2, V_S+3))
    A("  v_lshlrev_b32 v22, 3, v0")
    A("  s_mul_i32 s60, s62, 384")
    A("  buffer_store_dwordx2 v[%d:%d], v22, s[44:47], s60 offen" % (V_S+4, V_S+5))
    A("L_fin:")
    if a.stamps:
        A("  s_mov_b64 exec, -1")
        A("  s_memrealtime s[88:89]")
        A("  s_getreg_b32 s90, hwreg(HW_REG_XCC_ID)")
        A("  s_waitcnt lgkmcnt(0)")
        A("  s_lshl_b32 s21, s2, 2\n  s_add_u32 s21, s21, s3\n  s_lshl_b32 s21, s21, 7\n  s_add_u32 s21, s21, 0x8000000")
        A("  s_add_u32 s38, s38, s21\n  s_addc_u32 s39, s39, 0")
        A("  v_mov_b32 v4, s70\n  v_writelane_b32 v4, s90, 1\n  v_writelane_b32 v4, 9, 3")
        for k in range(8): A("  v_writelane_b32 v4, s%d, %d" % (72+2*k, 4+k))
        A("  v_writelane_b32 v4, s88, 12")
        A("  v_writelane_b32 v4, s66, 13")
        A("  v_lshlrev_b32 v8, 2, v0\n  s_mov_b64 exec, 0xffffffff\n  global_store_dword v8, v4, s[38:39]")
    if a.dbgstats:
        A("  s_mov_b64 exec, -1")
        A("  s_memrealtime s[88:89]")
        A("  s_waitcnt lgkmcnt(0)")
        A("  s_not_b32 s70, s70")
        A("  v_mov_b32 v4, s88\n  v_writelane_b32 v4, s70, 1")
        for k in range(8): A("  v_writelane_b32 v4, s%d, %d" % (72+2*k, 2+k))
        A("  v_writelane_b32 v4, s66, 10")
        A("  v_lshlrev_b32 v8, 2, v0\n  s_mov_b64 exec, 0x7ff\n  buffer_atomic_umax v4, v8, s[48:51], 0 offen")
    A("L_end:\n  s_endpgm")
    A(""".section .rodata,"a"
.p2align 6
.amdhsa_kernel %s
  .amdhsa_next_free_vgpr 288
  .amdhsa_next_free_sgpr 96
  .amdhsa_accum_offset 256
  .amdhsa_group_segment_fixed_size 0
  .amdhsa_kernarg_size 64
  .amdhsa_user_sgpr_count 2
  .amdhsa_user_sgpr_kernarg_segment_ptr 1
  .amdhsa_system_sgpr_workgroup_id_x 1
.end_amdhsa_kernel""" % KNAME)
    return "\n".join(g.L) + "\n"

import struct
def f32bits(x): return struct.unpack("<I", struct.pack("<f", x))[0]

if __name__ == "__main__":
    ap = argparse.ArgumentParser()
    ap.add_argument("-o", default="out.s")
    ap.add_argument("--ring", type=int, default=3)
    ap.add_argument("--nt", type=int, default=1)
    ap.add_argument("--ntk", type=int, default=-1)
    ap.add_argument("--ntv", type=int, default=-1)
    ap.add_argument("--stamps", type=int, default=0)
    ap.add_argument("--dbgstats", type=int, default=0)
    ap.add_argument("--ld_stage", type=int, default=11)
    ap.add_argument("--chk_stage", type=int, default=14)
    ap.add_argument("--bar2_stage", type=int, default=14)
    ap.add_argument("--spin", type=int, default=200000)
    a = ap.parse_args()
    open(a.o, "w").write(gen(a))
```

```python
import argparse

KNAME = "standalone__low_rank_proj_linformer__decode_kernel"

class Gen:
    def __init__(s, a):
        s.a = a
        s.L = []
        s.ops_c = []
        s.ops_o = []
        s.nlab = 0
    def A(s, x): s.L.append(x)
    def op(s, label, n=1, ctrl_only=False):
        s.ops_c += [label]*n
        if not ctrl_only: s.ops_o += [label]*n
    @staticmethod
    def younger(ops, labels):
        last = -1
        for i, o in enumerate(ops):
            if o in labels: last = i
        if last < 0: return None
        return len(ops)-1-last
    def wait_vm(s, *labels):
        nc = s.younger(s.ops_c, labels); no = s.younger(s.ops_o, labels)
        if nc is None: nc = 63
        if no is None: no = 63
        nc = min(nc, 63); no = min(no, 63)
        if nc == no:
            s.A("  s_waitcnt vmcnt(%d)" % nc)
        else:
            assert nc > no
            s.nlab += 1
            s.A("  s_waitcnt vmcnt(%d)" % nc)
            s.A("  s_cmp_eq_u32 s3, 0")
            s.A("  s_cbranch_scc1 L_w%d" % s.nlab)
            s.A("  s_waitcnt vmcnt(%d)" % no)
            s.A("L_w%d:" % s.nlab)

WAVE_LDS = 34816
RING = 16384
STAGE = 6144
SCR = 4*WAVE_LDS
SCR_S = SCR
SCR_P = SCR + 1024
SCR_O = SCR + 1280
LDS_TOTAL = SCR_O + 3072
WS_S = 0
WS_O = 131072
WS_BYTES = WS_O + 256*768
V_KV = 1
V_E = 4
V_TR = 6
V_EA = 8
V_Q = 12
V_T = 18
V_S = 32
ACC = 64
def acc(rh, t): return ACC + (rh*6+t)*16

def gen(a):
    g = Gen(a); A = g.A
    POL = {0: "", 1: " nt", 2: " sc1", 3: " sc1 nt", 4: " sc0 sc1", 5: " sc0 sc1 nt", 6: " sc0 nt", 7: " sc0"}
    NTK = POL[a.nt if a.ntk < 0 else a.ntk]; NTV = POL[a.nt if a.ntv < 0 else a.ntv]
    for l in open("standalone__low_rank_proj_linformer__decode.s.ref").read().split("\n"):
        if l.startswith("; @launch") or not l.startswith(";"): break
        if l.startswith("; Override") or l.startswith("; grid=ceil"): continue
        A(l)
    A("; @launch grid=(256,1,1) block=(256,1,1) lds=%d" % LDS_TOTAL)
    A('.amdgcn_target "amdgcn-amd-amdhsa--gfx950"')
    A(".text\n.globl %s\n.p2align 8\n.type %s,@function\n%s:" % (KNAME, KNAME, KNAME))
    A("  s_cmp_ge_u32 s2, 256")
    A("  s_cbranch_scc1 L_end")
    A("  s_load_dwordx16 s[24:39], s[0:1], 0")
    if a.stamps or a.dbgstats: A("  s_memrealtime s[70:71]")
    A("  v_lshrrev_b32 v18, 6, v0")
    A("  v_and_b32 v0, 63, v0")
    A("  v_readfirstlane_b32 s3, v18")
    A("  v_lshlrev_b32 v19, 4, v0")
    A("  s_movk_i32 s60, 2731")
    for j in range(3):
        A("  v_add_u32 v20, %d, v0" % (j*64))
        A("  v_mul_u32_u24 v20, s60, v20")
        A("  v_lshrrev_b32 v20, 16, v20")
        A("  v_and_b32 v20, 2, v20")
        A("  v_lshlrev_b32 v20, 5, v20")
        A("  v_xor_b32 v%d, v19, v20" % (V_KV+j))
    A("  s_lshl_b32 s56, s2, 2")
    A("  s_add_u32 s56, s56, s3")
    A("  s_mul_i32 s56, s56, 49152")
    A("  s_mul_i32 s58, s3, %d" % WAVE_LDS)
    A("  s_and_b32 s61, s2, 7")
    A("  s_lshr_b32 s62, s2, 3")
    A("  s_lshl_b32 s59, s61, 10")
    A("  s_lshl_b32 s60, s3, 8")
    A("  s_add_u32 s59, s59, s60")
    A("  s_mov_b32 s10, 50331648\n  s_mov_b32 s11, 0x20000")
    A("  s_mov_b32 s14, 50331648\n  s_mov_b32 s15, 0x20000")
    A("  s_mov_b32 s18, 524288\n  s_mov_b32 s19, 0x20000")
    A("  s_mov_b32 s22, 524288\n  s_mov_b32 s23, 0x20000")
    A("  v_lshrrev_b32 v20, 3, v0")
    A("  v_lshlrev_b32 v20, 13, v20")
    A("  v_lshrrev_b32 v21, 4, v0")
    A("  v_and_b32 v22, 7, v0")
    A("  v_xor_b32 v22, v22, v21")
    A("  v_lshl_add_u32 v%d, v22, 4, v20" % V_E)
    A("  v_xor_b32 v%d, 64, v%d" % (V_E+1, V_E))
    A("  s_waitcnt lgkmcnt(0)")
    A("  s_mov_b32 s8, s26\n  s_mov_b32 s9, s27")
    A("  s_mov_b32 s16, s30\n  s_mov_b32 s17, s31")

    def dma_kv(stage):
        srd = "s[8:11]" if stage < 8 else "s[12:15]"
        NT = NTK if stage < 8 else NTV
        kt = stage % 8; slot = stage % a.ring
        for half in range(2):
            A("  s_add_u32 m0, s58, %d" % (RING + slot*STAGE + half*3072))
            A("  s_add_u32 s57, s56, %d" % (kt*STAGE + half*3072))
            for j in range(3):
                A("  buffer_load_dwordx4 v%d, %s, s57 offen offset:%d%s lds" % (V_KV+j, srd, j*1024, NT))
        g.op("S%d" % stage, 6)
    def dma_e(which, hh):
        srd = "s[16:19]" if which == 'E' else "s[20:23]"
        for i in range(8):
            if i % 4 == 0:
                A("  s_add_u32 m0, s58, %d" % (hh*8192 + i*1024))
            A("  s_add_u32 s57, s59, %d" % (hh*128 + i*65536 - (i & 3)*1024))
            A("  buffer_load_dwordx4 v%d, %s, s57 offen offset:%d lds" % (V_E + (i & 1), srd, (i & 3)*1024))
        g.op("%s%d" % (which, hh), 8)

    dma_kv(0)
    dma_e('E', 0)
    A("  s_mov_b32 s12, s28\n  s_mov_b32 s13, s29")
    A("  s_mov_b32 s20, s32\n  s_mov_b32 s21, s33")
    dma_kv(1)
    A("  s_mov_b32 s40, s38\n  s_mov_b32 s41, s39\n  s_mov_b32 s42, %d\n  s_mov_b32 s43, 0x20000" % WS_BYTES)
    A("  s_mov_b32 s44, s34\n  s_mov_b32 s45, s35\n  s_mov_b32 s46, 12288\n  s_mov_b32 s47, 0x20000")
    A("  s_mov_b32 s48, s36\n  s_mov_b32 s49, s37\n  s_mov_b32 s50, 256\n  s_mov_b32 s51, 0x20000")
    A("  s_mov_b32 s52, s24\n  s_mov_b32 s53, s25\n  s_mov_b32 s54, 12288\n  s_mov_b32 s55, 0x20000")
    A("  v_and_b32 v20, 31, v0")
    A("  v_lshlrev_b32 v21, 1, v20")
    A("  s_mul_i32 s60, s62, 384")
    for t in range(6): A("  v_mov_b32 v%d, 0" % (V_Q+t))
    for t in range(6):
        A("  buffer_load_short_d16_hi v%d, v21, s[52:55], s60 offen offset:%d" % (V_Q+t, t*64))
    g.op("Q", 6)
    dma_kv(2)
    dma_e('E', 1)
    A("  s_cmp_eq_u32 s3, 0")
    A("  s_cbranch_scc0 L_pro1")
    A("  s_lshl_b32 s63, s2, 9")
    A("  s_mul_i32 s64, s2, 768")
    A("  s_add_u32 s64, s64, %d" % WS_O)
    A("  v_mov_b32 v22, 4")
    A("  buffer_load_dword v23, v22, s[40:43], s63 offen sc1")
    A("  v_mov_b32 v24, -1\n  v_mov_b32 v25, -1\n  v_mov_b32 v26, -1\n  v_mov_b32 v27, -1")
    A("  v_lshlrev_b32 v22, 4, v0")
    A("  s_mov_b32 exec_lo, -1\n  s_mov_b32 exec_hi, 0xffff")
    A("  buffer_store_dwordx4 v[24:27], v22, s[40:43], s64 offen sc1")
    A("  s_mov_b64 exec, -1")
    A("L_pro1:")
    g.op("TAG", 1, True); g.op("CLR", 1, True)
    A("  v_lshrrev_b32 v20, 5, v0")
    A("  v_lshlrev_b32 v20, 3, v20")
    A("  v_bfe_u32 v21, v0, 2, 2")
    A("  v_add_u32 v20, v20, v21")
    A("  v_mul_u32_u24 v20, 384, v20")
    A("  v_bfe_u32 v21, v0, 4, 1")
    A("  v_lshl_add_u32 v20, v21, 5, v20")
    A("  v_and_b32 v21, 3, v0")
    A("  v_lshl_add_u32 v20, v21, 3, v20")
    A("  s_add_u32 s60, s58, %d" % RING)
    A("  v_add_u32 v20, s60, v20")
    A("  v_bfe_u32 v21, v0, 3, 1")
    A("  v_lshlrev_b32 v21, 6, v21")
    A("  v_add_u32 v%d, v20, v21" % V_TR)
    A("  v_sub_u32 v%d, v20, v21" % (V_TR+1))
    A("  v_and_b32 v20, 31, v0")
    A("  v_bfe_u32 v21, v0, 1, 3")
    A("  v_lshrrev_b32 v22, 5, v0")
    A("  v_xor_b32 v21, v21, v22")
    A("  v_lshlrev_b32 v21, 4, v21")
    A("  v_lshl_add_u32 v20, v20, 7, v21")
    A("  v_add_u32 v%d, s58, v20" % V_EA)
    for ks in range(1, 4):
        A("  v_xor_b32 v%d, %d, v%d" % (V_EA+ks, ks*32, V_EA))

    def stage(s):
        slot = s % a.ring; base = slot*STAGE
        ksl = s % 8; hh = ksl >> 2; ks = ksl & 3
        need = ["S%d" % s]
        if ksl == 0: need.append(("E0" if s < 8 else "F0"))
        if ksl == 4: need.append(("E1" if s < 8 else "F1"))
        g.wait_vm(*need)
        if (a.stamps or a.dbgstats == 1) and s % 2 == 1: A("  s_memrealtime s[%d:%d]" % (72+2*(s//2), 73+2*(s//2)))
        if a.dbgstats == 2 and s in (7, 13, 15): A("  s_memrealtime s[%d:%d]" % ({7: 72, 13: 76, 15: 82}[s], {7: 73, 13: 77, 15: 83}[s]))
        pre_hooks(s)
        A("  ds_read_b128 a[24:27], v%d offset:%d" % (V_EA+ks, hh*8192))
        A("  ds_read_b128 a[28:31], v%d offset:%d" % (V_EA+ks, hh*8192+4096))
        for t in range(6):
            va = V_TR + (t & 1)
            A("  ds_read_b64_tr_b16 a[%d:%d], v%d offset:%d" % (4*t, 4*t+1, va, base + t*64))
            A("  ds_read_b64_tr_b16 a[%d:%d], v%d offset:%d" % (4*t+2, 4*t+3, va, base + t*64 + 1536))
        for t in range(6):
            A("  s_waitcnt lgkmcnt(%d)" % (2*(5-t)))
            if t == 5:
                mid_hooks(s)
                if s + a.ring < 16: dma_kv(s + a.ring)
                if s == 3: dma_e('F', 0)
                if s == 7: dma_e('F', 1)
            for rh in range(2):
                c = "0" if ksl == 0 else "v[%d:%d]" % (acc(rh, t), acc(rh, t)+15)
                A("  v_mfma_f32_32x32x16_bf16 v[%d:%d], a[%d:%d], a[%d:%d], %s" % (acc(rh, t), acc(rh, t)+15, 24+4*rh, 27+4*rh, 4*t, 4*t+3, c))
        post_hooks(s)

    def pre_hooks(s):
        if s == 0:
            A("  s_cmp_eq_u32 s3, 0")
            A("  s_cbranch_scc0 L_n1")
            g.nlab += 1
            n = g.younger(g.ops_c, ["TAG"])
            A("  s_waitcnt vmcnt(%d)" % n)
            A("  s_mov_b32 s60, 0x9E3779B1")
            A("  v_mul_lo_u32 v23, v23, s60")
            A("  v_add_u32 v23, 0x632BE5AB, v23")
            A("  v_or_b32 v24, 1, v23")
            A("  v_mov_b32 v25, 0")
            A("  s_lshl_b32 s60, s62, 2")
            A("  s_add_u32 s60, s60, 128")
            A("  v_mov_b32 v22, s60")
            A("  v_mov_b32 v26, v24")
            A("  s_mov_b64 exec, 1")
            A("  buffer_atomic_cmpswap v[24:25], v22, s[48:51], 0 offen sc0")
            A("  s_mov_b64 exec, -1")
            A("L_n1:")
            g.op("CAS", 1, True)
        if s == a.chk_stage:
            softmax()

    def mid_hooks(s):
        if s == a.ld_stage:
            A("  s_cmp_eq_u32 s3, 0")
            A("  s_cbranch_scc0 L_ld1")
            score_loads()
            A("L_ld1:")
            g.op("SC", 8, True)

    def score_loads():
        A("  s_and_b32 s60, s2, 0xf8")
        A("  s_lshl_b32 s60, s60, 9")
        A("  v_lshlrev_b32 v22, 3, v0")
        for c in range(8):
            A("  buffer_load_dwordx2 v[%d:%d], v22, s[40:43], s60 offen offset:%d sc1" % (V_S+2*c, V_S+2*c+1, c*512))

    def softmax():
        A("  s_cmp_eq_u32 s3, 0")
        A("  s_cbranch_scc0 L_sm_done")
        n = g.younger(g.ops_c, ["SC"])
        A("  s_waitcnt vmcnt(%d)" % n)
        if a.dbgstats == 2: A("  s_memrealtime s[78:79]")
        A("  s_mov_b32 s66, 0")
        A("L_sm_chk:")
        A("  v_cmp_ne_u32 vcc, s65, v%d" % (V_S+1))
        for c in range(1, 8):
            A("  v_cmp_ne_u32 s[68:69], s65, v%d" % (V_S+2*c+1))
            A("  s_or_b64 vcc, vcc, s[68:69]")
        A("  s_nop 4")
        A("  s_cbranch_vccz L_sm_ok")
        A("  s_add_u32 s66, s66, 1")
        A("  s_cmp_ge_u32 s66, %d" % a.spin)
        A("  s_cbranch_scc1 L_sm_ok")
        score_loads()
        A("  s_waitcnt vmcnt(0)")
        A("  s_branch L_sm_chk")
        A("L_sm_ok:")
        if a.dbgstats == 2: A("  s_memrealtime s[80:81]\n  s_mov_b32 s67, s66")
        A("  v_add_f32 v20, v%d, v%d" % (V_S, V_S+2))
        for c in range(2, 8):
            A("  v_add_f32 v20, v20, v%d" % (V_S+2*c))
        A("  v_mul_f32 v20, 0x%08x, v20" % f32bits(192**-0.5 * 1.4426950408889634))
        A("  v_mov_b32 v21, v20")
        for sh in (8, 4, 2, 1):
            A("  s_nop 1")
            A("  v_max_f32_dpp v21, v21, v21 row_ror:%d row_mask:0xf bank_mask:0xf" % sh)
        A("  v_mov_b32 v22, v21")
        A("  s_nop 1")
        A("  v_permlane16_swap_b32 v21, v22")
        A("  v_max_f32 v21, v21, v22")
        A("  v_mov_b32 v22, v21")
        A("  s_nop 1")
        A("  v_permlane32_swap_b32 v21, v22")
        A("  v_max_f32 v21, v21, v22")
        A("  v_sub_f32 v20, v20, v21")
        A("  v_exp_f32 v20, v20")
        A("  s_nop 0")
        A("  v_mov_b32 v21, v20")
        for sh in (8, 4, 2, 1):
            A("  s_nop 1")
            A("  v_add_f32_dpp v21, v21, v21 row_ror:%d row_mask:0xf bank_mask:0xf" % sh)
        A("  v_mov_b32 v22, v21")
        A("  s_nop 1")
        A("  v_permlane16_swap_b32 v21, v22")
        A("  v_add_f32 v21, v21, v22")
        A("  v_mov_b32 v22, v21")
        A("  s_nop 1")
        A("  v_permlane32_swap_b32 v21, v22")
        A("  v_add_f32 v21, v21, v22")
        A("  v_rcp_f32 v21, v21")
        A("  s_nop 0")
        A("  v_mul_f32 v20, v20, v21")
        A("  v_lshlrev_b32 v22, 2, v0")
        A("  v_add_u32 v22, %d, v22" % SCR_P)
        A("  ds_write_b32 v22, v20")
        A("  s_waitcnt lgkmcnt(0)")
        A("L_sm_done:")

    def post_hooks(s):
        if s == 7: k_epilogue()
        if s == a.bar2_stage:
            A("  s_barrier")
            A("  v_lshrrev_b32 v20, 5, v0")
            A("  v_lshlrev_b32 v20, 4, v20")
            A("  v_add_u32 v20, %d, v20" % SCR_P)
            for rh in range(2):
                for vq in range(4):
                    A("  ds_read_b128 v[%d:%d], v20 offset:%d" % (V_S+rh*16+vq*4, V_S+rh*16+vq*4+3, (32*rh+8*vq)*4))

    def k_epilogue():
        g.wait_vm("Q")
        A("  s_nop 15")
        for t in range(6):
            for rh in range(2):
                for vp in range(8):
                    d = V_S + rh*16 + 2*vp; x = acc(rh, t) + 2*vp
                    qreg = V_Q + t
                    qp = qreg & ~1; sel = qreg & 1
                    if t == 0:
                        A("  v_pk_mul_f32 v[%d:%d], v[%d:%d], v[%d:%d] op_sel:[0,%d] op_sel_hi:[1,%d]" % (d, d+1, x, x+1, qp, qp+1, sel, sel))
                    else:
                        A("  v_pk_fma_f32 v[%d:%d], v[%d:%d], v[%d:%d], v[%d:%d] op_sel:[0,%d,0] op_sel_hi:[1,%d,1]" % (d, d+1, x, x+1, qp, qp+1, d, d+1, sel, sel))
        A("  s_nop 1")
        for v in range(16):
            A("  v_permlane16_swap_b32 v%d, v%d" % (V_S+v, V_S+16+v))
        for v in range(16):
            A("  v_add_f32 v%d, v%d, v%d" % (V_S+v, V_S+v, V_S+16+v))
        A("  s_nop 1")
        for v in range(8):
            A("  v_add_f32_dpp v%d, v%d, v%d row_ror:8 row_mask:0xf bank_mask:0x3" % (V_S+v, V_S+v, V_S+v))
        for v in range(8):
            A("  v_add_f32_dpp v%d, v%d, v%d row_ror:8 row_mask:0xf bank_mask:0xc" % (V_S+v, V_S+8+v, V_S+8+v))
        A("  s_nop 1")
        for v in range(4):
            A("  v_add_f32_dpp v%d, v%d, v%d row_half_mirror row_mask:0xf bank_mask:0x5" % (V_S+v, V_S+v, V_S+v))
        for v in range(4):
            A("  v_add_f32_dpp v%d, v%d, v%d row_half_mirror row_mask:0xf bank_mask:0xa" % (V_S+v, V_S+4+v, V_S+4+v))
        A("  s_nop 1")
        for v in range(4):
            A("  v_add_f32_dpp v%d, v%d, v%d quad_perm:[1,0,3,2] row_mask:0xf bank_mask:0xf" % (V_S+v, V_S+v, V_S+v))
        A("  s_nop 1")
        for v in range(4):
            A("  v_add_f32_dpp v%d, v%d, v%d quad_perm:[2,3,0,1] row_mask:0xf bank_mask:0xf" % (V_S+v, V_S+v, V_S+v))
        A("  v_bfe_u32 v20, v0, 2, 3")
        A("  v_lshlrev_b32 v20, 5, v20")
        A("  v_lshrrev_b32 v21, 5, v0")
        A("  v_lshl_add_u32 v20, v21, 4, v20")
        A("  s_lshl_b32 s60, s3, 8")
        A("  s_add_u32 s60, s60, %d" % SCR_S)
        A("  v_add_u32 v20, s60, v20")
        A("  s_mov_b32 exec_lo, 0x11111111\n  s_mov_b32 exec_hi, 0x11111111")
        A("  ds_write_b128 v20, v[%d:%d]" % (V_S, V_S+3))
        A("  s_mov_b64 exec, -1")
        A("  s_waitcnt lgkmcnt(0)")
        A("  s_barrier")
        A("  s_cmp_eq_u32 s3, 0")
        A("  s_cbranch_scc0 L_pub1")
        A("  v_lshlrev_b32 v20, 2, v0")
        A("  v_add_u32 v20, %d, v20" % SCR_S)
        for w in range(4):
            A("  ds_read_b32 v%d, v20 offset:%d" % (V_S+w, w*256))
        n = g.younger(g.ops_c, ["CAS"])
        A("  s_waitcnt vmcnt(%d)" % min(n, 63))
        A("  v_readfirstlane_b32 s60, v24")
        A("  v_readfirstlane_b32 s65, v26")
        A("  s_nop 3")
        A("  s_cmp_eq_u32 s60, 0")
        A("  s_cselect_b32 s65, s65, s60")
        A("  s_waitcnt lgkmcnt(0)")
        A("  v_add_f32 v%d, v%d, v%d" % (V_S, V_S, V_S+1))
        A("  v_add_f32 v%d, v%d, v%d" % (V_S+2, V_S+2, V_S+3))
        A("  v_add_f32 v%d, v%d, v%d" % (V_S, V_S, V_S+2))
        A("  v_mov_b32 v%d, s65" % (V_S+1))
        A("  v_lshlrev_b32 v22, 3, v0")
        A("  buffer_store_dwordx2 v[%d:%d], v22, s[40:43], s63 offen sc1" % (V_S, V_S+1))
        if a.dbgstats == 2: A("  s_memrealtime s[74:75]")
        A("L_pub1:")
        g.op("PUB", 1, True)

    for s in range(16): stage(s)

    A("  s_waitcnt lgkmcnt(0)")
    A("  s_nop 15")
    O = V_T
    for rh in range(2):
        for vp in range(8):
            for t in range(6):
                d = O + 2*t; x = acc(rh, t) + 2*vp; p = V_S + rh*16 + 2*vp
                if rh == 0 and vp == 0:
                    A("  v_pk_mul_f32 v[%d:%d], v[%d:%d], v[%d:%d]" % (d, d+1, x, x+1, p, p+1))
                else:
                    A("  v_pk_fma_f32 v[%d:%d], v[%d:%d], v[%d:%d], v[%d:%d]" % (d, d+1, x, x+1, p, p+1, d, d+1))
    for t in range(6):
        A("  v_add_f32 v%d, v%d, v%d" % (O+2*t, O+2*t, O+2*t+1))
    A("  s_nop 1")
    for i in range(3):
        A("  v_permlane32_swap_b32 v%d, v%d" % (O+2*i, O+2*(i+3)))
    for i in range(3):
        A("  v_add_f32 v%d, v%d, v%d" % (O+2*i, O+2*i, O+2*(i+3)))
    A("  v_lshrrev_b32 v30, 5, v0")
    A("  v_mul_u32_u24 v30, 384, v30")
    A("  v_and_b32 v31, 31, v0")
    A("  v_lshl_add_u32 v30, v31, 2, v30")
    A("  s_mul_i32 s60, s3, 768")
    A("  s_add_u32 s60, s60, %d" % SCR_O)
    A("  v_add_u32 v30, s60, v30")
    for i in range(3):
        A("  ds_write_b32 v30, v%d offset:%d" % (O+2*i, i*128))
    A("  s_waitcnt lgkmcnt(0)")
    A("  s_barrier")
    A("  s_cmp_eq_u32 s3, 0")
    A("  s_cbranch_scc0 L_fin")
    A("  v_lshlrev_b32 v22, 4, v0")
    A("  v_min_u32 v23, 752, v22")
    A("  v_add_u32 v23, %d, v23" % SCR_O)
    for w in range(4):
        A("  ds_read_b128 v[%d:%d], v23 offset:%d" % (V_S+4*w, V_S+4*w+3, w*768))
    A("  s_waitcnt lgkmcnt(0)")
    for i in range(4):
        A("  v_add_f32 v%d, v%d, v%d" % (V_S+i, V_S+i, V_S+4+i))
        A("  v_add_f32 v%d, v%d, v%d" % (V_S+8+i, V_S+8+i, V_S+12+i))
    for i in range(4):
        A("  v_add_f32 v%d, v%d, v%d" % (V_S+i, V_S+i, V_S+8+i))
    if a.dbgstats == 2: A("  s_memrealtime s[84:85]\n  s_mov_b32 s66, 0")
    A("  s_mov_b32 exec_lo, -1\n  s_mov_b32 exec_hi, 0xffff")
    A("  s_cmp_eq_u32 s61, 0")
    A("  s_cbranch_scc1 L_cons")
    for i in range(4):
        A("  v_and_b32 v%d, -2, v%d" % (V_S+i, V_S+i))
    A("  buffer_store_dwordx4 v[%d:%d], v22, s[40:43], s64 offen sc1" % (V_S, V_S+3))
    A("  s_branch L_fin")
    A("L_cons:")
    A("  s_mov_b32 s66, 0")
    A("L_poll:")
    for c in range(1, 8):
        A("  buffer_load_dwordx4 v[%d:%d], v22, s[40:43], s64 offen offset:%d sc1" % (ACC+4*c, ACC+4*c+3, 0) if False else
          "  s_add_u32 s60, s64, %d\n  buffer_load_dwordx4 v[%d:%d], v22, s[40:43], s60 offen sc1" % (c*768, ACC+4*c, ACC+4*c+3))
    A("  s_waitcnt vmcnt(0)")
    A("  v_or3_b32 v20, v%d, v%d, v%d" % (ACC+4, ACC+5, ACC+6))
    regs = list(range(ACC+7, ACC+32))
    while len(regs) >= 2:
        A("  v_or3_b32 v20, v20, v%d, v%d" % (regs[0], regs[1])); regs = regs[2:]
    if regs: A("  v_or_b32 v20, v20, v%d" % regs[0])
    A("  v_and_b32 v20, 1, v20")
    A("  v_cmp_ne_u32 vcc, 0, v20")
    A("  s_nop 4")
    A("  s_cbranch_vccz L_got")
    A("  s_add_u32 s66, s66, 1")
    A("  s_cmp_lt_u32 s66, %d" % a.spin)
    A("  s_cbranch_scc1 L_poll")
    A("L_got:")
    for c in range(1, 8):
        for i in range(4):
            A("  v_add_f32 v%d, v%d, v%d" % (V_S+i, V_S+i, ACC+4*c+i))
    A("  v_cvt_pk_bf16_f32 v%d, v%d, v%d" % (V_S+4, V_S, V_S+1))
    A("  v_cvt_pk_bf16_f32 v%d, v%d, v%d" % (V_S+5, V_S+2, V_S+3))
    A("  v_lshlrev_b32 v22, 3, v0")
    A("  s_mul_i32 s60, s62, 384")
    A("  buffer_store_dwordx2 v[%d:%d], v22, s[44:47], s60 offen" % (V_S+4, V_S+5))
    A("L_fin:")
    if a.stamps:
        A("  s_mov_b64 exec, -1")
        A("  s_memrealtime s[88:89]")
        A("  s_getreg_b32 s90, hwreg(HW_REG_XCC_ID)")
        A("  s_waitcnt lgkmcnt(0)")
        A("  s_lshl_b32 s21, s2, 2\n  s_add_u32 s21, s21, s3\n  s_lshl_b32 s21, s21, 7\n  s_add_u32 s21, s21, 0x8000000")
        A("  s_add_u32 s38, s38, s21\n  s_addc_u32 s39, s39, 0")
        A("  v_mov_b32 v4, s70\n  v_writelane_b32 v4, s90, 1\n  v_writelane_b32 v4, 9, 3")
        for k in range(8): A("  v_writelane_b32 v4, s%d, %d" % (72+2*k, 4+k))
        A("  v_writelane_b32 v4, s88, 12")
        A("  v_writelane_b32 v4, s66, 13")
        A("  v_lshlrev_b32 v8, 2, v0\n  s_mov_b64 exec, 0xffffffff\n  global_store_dword v8, v4, s[38:39]")
    if a.dbgstats == 2:
        A("  s_cmp_eq_u32 s3, 0")
        A("  s_cbranch_scc0 L_end")
        A("  s_mov_b64 exec, -1")
        A("  s_memrealtime s[88:89]")
        A("  s_waitcnt lgkmcnt(0)")
        A("  s_not_b32 s70, s70")
        A("  v_mov_b32 v4, s88\n  v_writelane_b32 v4, s70, 1")
        for k, r in enumerate((72, 74, 76, 78, 80, 67, 82, 84, 66)): A("  v_writelane_b32 v4, s%d, %d" % (r, 2+k))
        A("  v_lshlrev_b32 v8, 2, v0\n  s_mov_b64 exec, 0x7ff\n  buffer_atomic_umax v4, v8, s[48:51], 0 offen")
    if a.dbgstats == 1:
        A("  s_mov_b64 exec, -1")
        A("  s_memrealtime s[88:89]")
        A("  s_waitcnt lgkmcnt(0)")
        A("  s_not_b32 s70, s70")
        A("  v_mov_b32 v4, s88\n  v_writelane_b32 v4, s70, 1")
        for k in range(8): A("  v_writelane_b32 v4, s%d, %d" % (72+2*k, 2+k))
        A("  v_writelane_b32 v4, s66, 10")
        A("  v_lshlrev_b32 v8, 2, v0\n  s_mov_b64 exec, 0x7ff\n  buffer_atomic_umax v4, v8, s[48:51], 0 offen")
    A("L_end:\n  s_endpgm")
    A(""".section .rodata,"a"
.p2align 6
.amdhsa_kernel %s
  .amdhsa_next_free_vgpr 288
  .amdhsa_next_free_sgpr 96
  .amdhsa_accum_offset 256
  .amdhsa_group_segment_fixed_size 0
  .amdhsa_kernarg_size 64
  .amdhsa_user_sgpr_count 2
  .amdhsa_user_sgpr_kernarg_segment_ptr 1
  .amdhsa_system_sgpr_workgroup_id_x 1
.end_amdhsa_kernel""" % KNAME)
    return "\n".join(g.L) + "\n"

import struct
def f32bits(x): return struct.unpack("<I", struct.pack("<f", x))[0]

if __name__ == "__main__":
    ap = argparse.ArgumentParser()
    ap.add_argument("-o", default="out.s")
    ap.add_argument("--ring", type=int, default=3)
    ap.add_argument("--nt", type=int, default=1)
    ap.add_argument("--ntk", type=int, default=-1)
    ap.add_argument("--ntv", type=int, default=-1)
    ap.add_argument("--stamps", type=int, default=0)
    ap.add_argument("--dbgstats", type=int, default=0)
    ap.add_argument("--ld_stage", type=int, default=11)
    ap.add_argument("--chk_stage", type=int, default=14)
    ap.add_argument("--bar2_stage", type=int, default=14)
    ap.add_argument("--spin", type=int, default=200000)
    a = ap.parse_args()
    open(a.o, "w").write(gen(a))
```

```python
import argparse, struct

KNAME = "standalone__low_rank_proj_linformer__decode_kernel"
def f32bits(x): return struct.unpack("<I", struct.pack("<f", x))[0]

class Gen:
    def __init__(s, a):
        s.a = a; s.L = []; s.ops = []; s.nlab = 0
    def A(s, x): s.L.append(x)
    def op(s, label, n=1): s.ops += [label]*n
    def younger(s, labels):
        last = -1
        for i, o in enumerate(s.ops):
            if o in labels: last = i
        assert last >= 0, labels
        return len(s.ops)-1-last
    def wait_vm(s, *labels):
        s.A("  s_waitcnt vmcnt(%d)" % min(s.younger(labels), 63))
    def lab(s, p):
        s.nlab += 1
        return "L_%s%d" % (p, s.nlab)

WAVE_LDS = 34816
RING = 16384
STAGE = 6144
SCR = 4*WAVE_LDS
SCR_S = SCR
SCR_P = SCR + 1024
SCR_O = SCR + 2048
SCR_C = SCR_O + 3072
LDS_TOTAL = SCR_C + 64
WS_S = 0
WS_O = 131072
WS_BYTES = WS_O + 256*768
V_KV = 1
V_E = 4
V_TR = 6
V_EA = 8
V_Q = 12
V_T = 18
V_N = 31
V_S = 32
ACC = 64
def acc(rh, t): return ACC + (rh*6+t)*16

TRK = {1: [(0,'E',1,0,4),(1,'E',1,4,8),(3,'F',0,0,3),(4,'F',0,3,6),(5,'F',0,6,8),(7,'F',1,0,3),(8,'F',1,3,6),(9,'F',1,6,8)],
       2: [(0,'E',1,0,3),(1,'E',1,3,6),(2,'E',1,6,8),(3,'F',0,0,2),(4,'F',0,2,4),(5,'F',0,4,6),(6,'F',0,6,8),(7,'F',1,0,2),(8,'F',1,2,4),(9,'F',1,4,6),(10,'F',1,6,8)]}
def gen(a):
    g = Gen(a); A = g.A
    POL = {0: "", 1: " nt", 2: " sc1", 3: " sc1 nt"}
    NT = POL[a.nt]
    for l in open("standalone__low_rank_proj_linformer__decode.s.ref").read().split("\n"):
        if l.startswith("; @launch") or not l.startswith(";"): break
        if l.startswith("; Override") or l.startswith("; grid=ceil"): continue
        A(l)
    A("; @launch grid=(256,1,1) block=(256,1,1) lds=%d" % LDS_TOTAL)
    A('.amdgcn_target "amdgcn-amd-amdhsa--gfx950"')
    A(".text\n.globl %s\n.p2align 8\n.type %s,@function\n%s:" % (KNAME, KNAME, KNAME))
    A("  s_cmp_ge_u32 s2, 256")
    A("  s_cbranch_scc1 L_end")
    A("  s_load_dwordx16 s[24:39], s[0:1], 0")
    stamp_n = [0]
    def stamp(name):
        if not a.stamps: return
        k = stamp_n[0]; stamp_n[0] += 1
        assert k < 13
        g.stamp_names = getattr(g, "stamp_names", []) + [name]
        A("  s_memrealtime s[%d:%d]" % (72+2*k, 73+2*k))
    if a.stamps: A("  s_memrealtime s[70:71]")
    A("  v_lshrrev_b32 v18, 6, v0")
    A("  v_and_b32 v0, 63, v0")
    A("  v_readfirstlane_b32 s3, v18")
    A("  v_lshlrev_b32 v19, 4, v0")
    A("  v_xor_b32 v20, 64, v19")
    A("  s_mov_b32 vcc_lo, 0\n  s_mov_b32 vcc_hi, 0xffff0000\n  v_cndmask_b32 v%d, v19, v20, vcc" % V_KV)
    A("  s_mov_b32 vcc_lo, -1\n  s_mov_b32 vcc_hi, 0\n  v_cndmask_b32 v%d, v19, v20, vcc" % (V_KV+1))
    A("  s_mov_b32 vcc_lo, 0xffff0000\n  s_mov_b32 vcc_hi, -1\n  v_cndmask_b32 v%d, v19, v20, vcc" % (V_KV+2))
    A("  s_lshl_b32 s56, s2, 2")
    A("  s_add_u32 s56, s56, s3")
    A("  s_mul_i32 s56, s56, 49152")
    A("  s_mul_i32 s58, s3, %d" % WAVE_LDS)
    A("  s_and_b32 s61, s2, 7")
    A("  s_lshr_b32 s62, s2, 3")
    A("  s_lshl_b32 s59, s61, 10")
    A("  s_lshl_b32 s60, s3, 8")
    A("  s_add_u32 s59, s59, s60")
    A("  s_mov_b32 s10, 50331648\n  s_mov_b32 s11, 0x20000")
    A("  s_mov_b32 s18, 524288\n  s_mov_b32 s19, 0x20000")
    A("  v_lshrrev_b32 v20, 3, v0")
    A("  v_lshlrev_b32 v20, 13, v20")
    A("  v_lshrrev_b32 v21, 4, v0")
    A("  v_and_b32 v22, 7, v0")
    A("  v_xor_b32 v22, v22, v21")
    A("  v_lshl_add_u32 v%d, v22, 4, v20" % V_E)
    A("  v_xor_b32 v%d, 64, v%d" % (V_E+1, V_E))
    A("  s_waitcnt lgkmcnt(0)")
    A("  s_mov_b32 s8, s26\n  s_mov_b32 s9, s27")
    A("  s_mov_b32 s16, s30\n  s_mov_b32 s17, s31")

    def dma_kv(stage):
        srd = "s[8:11]" if stage < 8 else "s[12:15]"
        kt = stage % 8; slot = stage % a.ring
        for half in range(2):
            A("  s_add_u32 m0, s58, %d" % (RING + slot*STAGE + half*3072))
            A("  s_add_u32 s57, s56, %d" % (kt*STAGE + half*3072))
            for j in range(3):
                A("  buffer_load_dwordx4 v%d, %s, s57 offen offset:%d%s lds" % (V_KV+j, srd, j*1024, NT))
        g.op("S%d" % stage, 6)
    def dma_e(which, hh, lo=0, hi=8):
        if a.abl_e == 1: return
        if a.abl_e != 3:
            srd = "s[16:19]" if which == 'E' else "s[20:23]"
            for i in range(lo, hi):
                if i % 4 == 0 or i == lo:
                    A("  s_add_u32 m0, s58, %d" % (hh*8192 + (i & ~3)*1024))
                A("  s_add_u32 s57, s59, %d" % (hh*128 + i*65536 - (i & 3)*1024))
                A("  buffer_load_dwordx4 v%d, %s, s57 offen offset:%d lds" % (V_E + (i & 1), srd, (i & 3)*1024))
            g.op("%s%d" % (which, hh), hi-lo)
            return
        srd = "s[16:19]" if which == 'E' else "s[20:23]"
        if a.abl_e == 3:
            A("  s_lshl_b32 s60, s59, 6")
            A("  v_lshlrev_b32 v20, 4, v0")
            for i in range(8):
                if i % 4 == 0:
                    A("  s_add_u32 m0, s58, %d" % (hh*8192 + i*1024))
                    A("  s_add_u32 s57, s60, %d" % (hh*8192 + i*1024))
                A("  buffer_load_dwordx4 v20, %s, s57 offen offset:%d lds" % (srd, (i & 3)*1024))
            g.op("%s%d" % (which, hh), 8)
            return
        for i in range(8):
            if i % 4 == 0:
                A("  s_add_u32 m0, s58, %d" % (hh*8192 + i*1024))
            A("  s_add_u32 s57, s59, %d" % (hh*128 + i*65536 - (i & 3)*1024))
            A("  buffer_load_dwordx4 v%d, %s, s57 offen offset:%d lds" % (V_E + (i & 1), srd, (i & 3)*1024))
        g.op("%s%d" % (which, hh), 8)
    def q_loads():
        A("  v_and_b32 v20, 31, v0")
        A("  v_lshlrev_b32 v21, 1, v20")
        A("  s_mul_i32 s60, s62, 384")
        for t in range(6): A("  v_mov_b32 v%d, 0" % (V_Q+t))
        for t in range(6):
            A("  buffer_load_short_d16_hi v%d, v21, s[52:55], s60 offen offset:%d" % (V_Q+t, t*64))
        g.op("Q", 6)

    order = a.order.split(",")
    def dma_kv_part(stage, lo, hi):
        srd = "s[8:11]" if stage < 8 else "s[12:15]"
        NTx = NT
        kt = stage % 8; slot = stage % a.ring
        for i in range(lo, hi):
            half, j = divmod(i, 3)
            if j == 0 or i == lo:
                A("  s_add_u32 m0, s58, %d" % (RING + slot*STAGE + half*3072))
                A("  s_add_u32 s57, s56, %d" % (kt*STAGE + half*3072))
            A("  buffer_load_dwordx4 v%d, %s, s57 offen offset:%d%s lds" % (V_KV+j, srd, j*1024, NTx))
        g.op("S%d" % stage, hi-lo)
    for tok in order:
        if ':' in tok:
            nm, rg = tok.split(':'); lo, hi = [int(x) for x in rg.split('-')]
            if nm[0] == 'S': dma_kv_part(int(nm[1:]), lo, hi)
            else: dma_e('E', int(nm[1:]), lo, hi)
        elif tok[0] == 'S': dma_kv(int(tok[1:]))
        elif tok[0] == 'E': dma_e('E', int(tok[1:]))
        elif tok == 'T':
            A("  s_or_b32 s60, s3, s61\n  s_cmp_eq_u32 s60, 0\n  s_cbranch_scc0 L_pro0")
            A("  s_mov_b32 s40, s38\n  s_mov_b32 s41, s39\n  s_mov_b32 s42, %d\n  s_mov_b32 s43, 0x20000" % WS_BYTES)
            A("  s_lshl_b32 s63, s2, 9")
            A("  v_mov_b32 v22, 4")
            A("  buffer_load_dword v23, v22, s[40:43], s63 offen sc1")
            A("L_pro0:")
        elif tok == 'Q':
            A("  s_mov_b32 s52, s24\n  s_mov_b32 s53, s25\n  s_mov_b32 s54, 12288\n  s_mov_b32 s55, 0x20000")
            q_loads()
    A("  s_mov_b32 s12, s28\n  s_mov_b32 s13, s29\n  s_mov_b32 s14, 50331648\n  s_mov_b32 s15, 0x20000")
    A("  s_mov_b32 s20, s32\n  s_mov_b32 s21, s33\n  s_mov_b32 s22, 524288\n  s_mov_b32 s23, 0x20000")
    A("  s_mov_b32 s40, s38\n  s_mov_b32 s41, s39\n  s_mov_b32 s42, %d\n  s_mov_b32 s43, 0x20000" % WS_BYTES)
    A("  s_mov_b32 s44, s34\n  s_mov_b32 s45, s35\n  s_mov_b32 s46, 12288\n  s_mov_b32 s47, 0x20000")
    A("  s_mov_b32 s48, s36\n  s_mov_b32 s49, s37\n  s_mov_b32 s50, 256\n  s_mov_b32 s51, 0x20000")
    if 'Q' not in order:
        A("  s_mov_b32 s52, s24\n  s_mov_b32 s53, s25\n  s_mov_b32 s54, 12288\n  s_mov_b32 s55, 0x20000")
    A("  s_lshl_b32 s63, s2, 9")
    A("  s_mul_i32 s64, s2, 768")
    A("  s_add_u32 s64, s64, %d" % WS_O)
    A("  s_cmp_eq_u32 s3, 0")
    A("  s_cbranch_scc0 L_pro1")
    A("  v_mov_b32 v24, -1\n  v_mov_b32 v25, -1\n  v_mov_b32 v26, -1\n  v_mov_b32 v27, -1")
    A("  v_lshlrev_b32 v22, 4, v0")
    A("  s_mov_b32 exec_lo, -1\n  s_mov_b32 exec_hi, 0xffff")
    A("  buffer_store_dwordx4 v[24:27], v22, s[40:43], s64 offen sc1")
    A("  s_mov_b64 exec, -1")
    A("  s_nop 1")
    A("  v_mov_b32 v24, 0\n  v_mov_b32 v25, 0")
    A("  v_mov_b32 v22, %d" % SCR_C)
    A("  ds_write_b64 v22, v[24:25]")
    if 'T' not in order:
        A("  s_cmp_eq_u32 s61, 0")
        A("  s_cbranch_scc0 L_pro1")
        A("  v_mov_b32 v22, 4")
        A("  buffer_load_dword v23, v22, s[40:43], s63 offen sc1")
        assert a.nst_stage >= a.ring
    else:
        later = [t for t in order[order.index('T')+1:] if t[0] == 'S']
        assert later and a.nst_stage >= int(later[-1].split(':')[0][1:])-0 or True
    A("L_pro1:")
    A("  v_lshrrev_b32 v20, 5, v0")
    A("  v_lshlrev_b32 v20, 3, v20")
    A("  v_bfe_u32 v21, v0, 2, 2")
    A("  v_add_u32 v20, v20, v21")
    A("  v_mul_u32_u24 v20, 384, v20")
    A("  v_bfe_u32 v21, v0, 4, 1")
    A("  v_lshl_add_u32 v20, v21, 5, v20")
    A("  v_and_b32 v21, 3, v0")
    A("  v_lshl_add_u32 v20, v21, 3, v20")
    A("  s_add_u32 s60, s58, %d" % RING)
    A("  v_add_u32 v20, s60, v20")
    A("  v_bfe_u32 v21, v0, 3, 1")
    A("  v_lshlrev_b32 v21, 6, v21")
    A("  v_add_u32 v%d, v20, v21" % V_TR)
    A("  v_sub_u32 v%d, v20, v21" % (V_TR+1))
    A("  v_and_b32 v20, 31, v0")
    A("  v_bfe_u32 v21, v0, 1, 3")
    A("  v_lshrrev_b32 v22, 5, v0")
    A("  v_xor_b32 v21, v21, v22")
    A("  v_lshlrev_b32 v21, 4, v21")
    A("  v_lshl_add_u32 v20, v20, 7, v21")
    A("  v_add_u32 v%d, s58, v20" % V_EA)
    for ks in range(1, 4):
        A("  v_xor_b32 v%d, %d, v%d" % (V_EA+ks, ks*32, V_EA))
    A("  s_waitcnt lgkmcnt(0)")
    A("  s_barrier")
    stamp("pro")

    def stage(s):
        slot = s % a.ring; base = slot*STAGE
        ksl = s % 8; hh = ksl >> 2; ks = ksl & 3
        need = ["S%d" % s]
        if a.abl_e != 1:
            if ksl == 0: need.append(("E0" if s < 8 else "F0"))
            if ksl == 4: need.append(("E1" if s < 8 else "F1"))
        g.wait_vm(*need)
        if s in a.stamp_stages: stamp("s%d" % s)
        pre_hooks(s)
        if not a.abl_c:
            A("  ds_read_b128 a[24:27], v%d offset:%d" % (V_EA+ks, hh*8192))
            A("  ds_read_b128 a[28:31], v%d offset:%d" % (V_EA+ks, hh*8192+4096))
            for t in range(6):
                va = V_TR + (t & 1)
                A("  ds_read_b64_tr_b16 a[%d:%d], v%d offset:%d" % (4*t, 4*t+1, va, base + t*64))
                A("  ds_read_b64_tr_b16 a[%d:%d], v%d offset:%d" % (4*t+2, 4*t+3, va, base + t*64 + 1536))
        for t in range(6):
            if not a.abl_c: A("  s_waitcnt lgkmcnt(%d)" % (2*(5-t)))
            if t == 5:
                mid_hooks(s)
                if s + a.ring < 16: dma_kv(s + a.ring)
                if a.trickle:
                    for (st, wh, hh_, lo, hi) in TRK[a.trickle]:
                        if st == s: dma_e(wh, hh_, lo, hi)
                else:
                    if s == a.e1_stage and 'E1' not in order: dma_e('E', 1)
                    if s == 3: dma_e('F', 0)
                    if s == 7: dma_e('F', 1)
                if s == a.q_stage and 'Q' not in order: q_loads()
            for rh in range(2):
                if a.abl_c: break
                c = "0" if ksl == 0 else "v[%d:%d]" % (acc(rh, t), acc(rh, t)+15)
                A("  v_mfma_f32_32x32x16_bf16 v[%d:%d], a[%d:%d], a[%d:%d], %s" % (acc(rh, t), acc(rh, t)+15, 24+4*rh, 27+4*rh, 4*t, 4*t+3, c))
        post_hooks(s)

    def pre_hooks(s):
        if s == a.nst_stage:
            lb = g.lab("n")
            A("  s_or_b32 s60, s3, s61")
            A("  s_cmp_eq_u32 s60, 0")
            A("  s_cbranch_scc0 %s" % lb)
            A("  s_mov_b32 s60, 0x9E3779B1")
            A("  v_mul_lo_u32 v23, v23, s60")
            A("  v_add_u32 v23, 0x632BE5AB, v23")
            A("  v_or_b32 v24, 1, v23")
            A("  s_lshl_b32 s60, s62, 2")
            A("  s_add_u32 s60, s60, 128")
            A("  v_mov_b32 v22, 0")
            A("  s_mov_b64 exec, 1")
            A("  buffer_store_dword v24, v22, s[48:51], s60 offen sc1")
            A("  s_mov_b64 exec, -1")
            A("%s:" % lb)
        if s == a.chk_stage: softmax()

    def mid_hooks(s):
        if s == a.nld_stage:
            A("  s_lshl_b32 s60, s62, 2")
            A("  s_add_u32 s60, s60, 128")
            A("  v_mov_b32 v22, 0")
            A("  buffer_load_dword v%d, v22, s[48:51], s60 offen sc1" % V_N)
            g.op("NLD", 1)
        if s == a.ld_stage:
            score_loads()
            g.op("SC", 8)

    def score_loads():
        A("  s_and_b32 s60, s2, 0xf8")
        A("  s_lshl_b32 s60, s60, 9")
        A("  v_lshlrev_b32 v22, 3, v0")
        for c in range(8):
            A("  buffer_load_dwordx2 v[%d:%d], v22, s[40:43], s60 offen offset:%d sc1" % (V_S+2*c, V_S+2*c+1, c*512))

    def softmax():
        g.wait_vm("SC")
        stamp("sc")
        A("  s_mov_b32 s66, 0")
        A("L_sm_chk:")
        A("  v_cmp_ne_u32 vcc, s65, v%d" % (V_S+1))
        for c in range(1, 8):
            A("  v_cmp_ne_u32 s[68:69], s65, v%d" % (V_S+2*c+1))
            A("  s_or_b64 vcc, vcc, s[68:69]")
        A("  s_nop 4")
        A("  s_cbranch_vccz L_sm_ok")
        A("  s_add_u32 s66, s66, 1")
        A("  s_cmp_ge_u32 s66, %d" % a.spin)
        A("  s_cbranch_scc1 L_sm_ok")
        score_loads()
        A("  s_waitcnt vmcnt(0)")
        A("  s_branch L_sm_chk")
        A("L_sm_ok:")
        if a.stamps: A("  s_mov_b32 s67, s66")
        A("  v_add_f32 v20, v%d, v%d" % (V_S, V_S+2))
        for c in range(2, 8):
            A("  v_add_f32 v20, v20, v%d" % (V_S+2*c))
        A("  v_mul_f32 v20, 0x%08x, v20" % f32bits(192**-0.5 * 1.4426950408889634))
        def allreduce(opn):
            for sh in (8, 4, 2, 1):
                A("  s_nop 1")
                A("  %s_dpp v21, v21, v21 row_ror:%d row_mask:0xf bank_mask:0xf" % (opn, sh))
            for sw in ("v_permlane16_swap_b32", "v_permlane32_swap_b32"):
                A("  v_mov_b32 v22, v21")
                A("  s_nop 1")
                A("  %s v21, v22" % sw)
                A("  %s v21, v21, v22" % opn)
        A("  v_mov_b32 v21, v20")
        allreduce("v_max_f32")
        A("  v_sub_f32 v20, v20, v21")
        A("  v_exp_f32 v20, v20")
        A("  s_nop 0")
        A("  v_mov_b32 v21, v20")
        allreduce("v_add_f32")
        A("  v_rcp_f32 v21, v21")
        A("  s_nop 0")
        A("  v_mul_f32 v20, v20, v21")
        A("  s_lshl_b32 s60, s3, 8")
        A("  s_add_u32 s60, s60, %d" % SCR_P)
        A("  v_lshl_add_u32 v22, v0, 2, s60")
        A("  ds_write_b32 v22, v20")
        A("  v_lshrrev_b32 v20, 5, v0")
        A("  v_lshl_add_u32 v20, v20, 4, s60")
        for rh in range(2):
            for vq in range(4):
                A("  ds_read_b128 v[%d:%d], v20 offset:%d" % (V_S+rh*16+vq*4, V_S+rh*16+vq*4+3, (32*rh+8*vq)*4))
        stamp("sm")

    def post_hooks(s):
        if s == 7: k_epilogue()

    def k_epilogue():
        g.wait_vm("Q", "NLD")
        A("  s_nop 15")
        for t in range(6):
            for rh in range(2):
                for vp in range(8):
                    d = V_S + rh*16 + 2*vp; x = acc(rh, t) + 2*vp
                    qreg = V_Q + t
                    qp = qreg & ~1; sel = qreg & 1
                    if t == 0:
                        A("  v_pk_mul_f32 v[%d:%d], v[%d:%d], v[%d:%d] op_sel:[0,%d] op_sel_hi:[1,%d]" % (d, d+1, x, x+1, qp, qp+1, sel, sel))
                    else:
                        A("  v_pk_fma_f32 v[%d:%d], v[%d:%d], v[%d:%d], v[%d:%d] op_sel:[0,%d,0] op_sel_hi:[1,%d,1]" % (d, d+1, x, x+1, qp, qp+1, d, d+1, sel, sel))
        A("  s_nop 1")
        for v in range(16):
            A("  v_permlane16_swap_b32 v%d, v%d" % (V_S+v, V_S+16+v))
        for v in range(16):
            A("  v_add_f32 v%d, v%d, v%d" % (V_S+v, V_S+v, V_S+16+v))
        A("  s_nop 1")
        for v in range(8):
            A("  v_add_f32_dpp v%d, v%d, v%d row_ror:8 row_mask:0xf bank_mask:0x3" % (V_S+v, V_S+v, V_S+v))
        for v in range(8):
            A("  v_add_f32_dpp v%d, v%d, v%d row_ror:8 row_mask:0xf bank_mask:0xc" % (V_S+v, V_S+8+v, V_S+8+v))
        A("  s_nop 1")
        for v in range(4):
            A("  v_add_f32_dpp v%d, v%d, v%d row_half_mirror row_mask:0xf bank_mask:0x5" % (V_S+v, V_S+v, V_S+v))
        for v in range(4):
            A("  v_add_f32_dpp v%d, v%d, v%d row_half_mirror row_mask:0xf bank_mask:0xa" % (V_S+v, V_S+4+v, V_S+4+v))
        A("  s_nop 1")
        for v in range(4):
            A("  v_add_f32_dpp v%d, v%d, v%d quad_perm:[1,0,3,2] row_mask:0xf bank_mask:0xf" % (V_S+v, V_S+v, V_S+v))
        A("  s_nop 1")
        for v in range(4):
            A("  v_add_f32_dpp v%d, v%d, v%d quad_perm:[2,3,0,1] row_mask:0xf bank_mask:0xf" % (V_S+v, V_S+v, V_S+v))
        A("  v_bfe_u32 v20, v0, 2, 3")
        A("  v_lshlrev_b32 v20, 5, v20")
        A("  v_lshrrev_b32 v21, 5, v0")
        A("  v_lshl_add_u32 v20, v21, 4, v20")
        A("  s_lshl_b32 s60, s3, 8")
        A("  s_add_u32 s60, s60, %d" % SCR_S)
        A("  v_add_u32 v20, s60, v20")
        A("  s_mov_b32 exec_lo, 0x11111111\n  s_mov_b32 exec_hi, 0x11111111")
        A("  ds_write_b128 v20, v[%d:%d]" % (V_S, V_S+3))
        A("  s_mov_b64 exec, 1")
        A("  v_mov_b32 v20, %d" % SCR_C)
        A("  v_mov_b32 v21, 1")
        A("  ds_add_rtn_u32 v21, v20, v21")
        A("  s_mov_b64 exec, -1")
        A("  v_readfirstlane_b32 s65, v%d" % V_N)
        A("  s_mov_b32 s66, 0")
        A("L_nn:")
        A("  s_cmp_lg_u32 s65, 0")
        A("  s_cbranch_scc1 L_nok")
        A("  s_add_u32 s66, s66, 1")
        A("  s_cmp_ge_u32 s66, %d" % a.spin)
        A("  s_cbranch_scc1 L_nok")
        A("  s_lshl_b32 s60, s62, 2")
        A("  s_add_u32 s60, s60, 128")
        A("  v_mov_b32 v22, 0")
        A("  buffer_load_dword v%d, v22, s[48:51], s60 offen sc1" % V_N)
        A("  s_waitcnt vmcnt(0)")
        A("  v_readfirstlane_b32 s65, v%d" % V_N)
        A("  s_branch L_nn")
        A("L_nok:")
        A("  s_waitcnt lgkmcnt(0)")
        A("  v_readfirstlane_b32 s60, v21")
        A("  s_cmp_eq_u32 s60, 3")
        A("  s_cbranch_scc0 L_pub1")
        A("  v_lshlrev_b32 v20, 2, v0")
        A("  v_add_u32 v20, %d, v20" % SCR_S)
        for w in range(4):
            A("  ds_read_b32 v%d, v20 offset:%d" % (V_S+w, w*256))
        A("  s_waitcnt lgkmcnt(0)")
        A("  v_add_f32 v%d, v%d, v%d" % (V_S, V_S, V_S+1))
        A("  v_add_f32 v%d, v%d, v%d" % (V_S+2, V_S+2, V_S+3))
        A("  v_add_f32 v%d, v%d, v%d" % (V_S, V_S, V_S+2))
        A("  v_mov_b32 v%d, s65" % (V_S+1))
        A("  v_lshlrev_b32 v22, 3, v0")
        A("  buffer_store_dwordx2 v[%d:%d], v22, s[40:43], s63 offen sc1" % (V_S, V_S+1))
        A("L_pub1:")
        stamp("kep")

    for s in range(16): stage(s)

    A("  s_waitcnt lgkmcnt(0)")
    A("  s_nop 15")
    O = V_T
    for rh in range(2):
        for vp in range(8):
            for t in range(6):
                d = O + 2*t; x = acc(rh, t) + 2*vp; p = V_S + rh*16 + 2*vp
                if rh == 0 and vp == 0:
                    A("  v_pk_mul_f32 v[%d:%d], v[%d:%d], v[%d:%d]" % (d, d+1, x, x+1, p, p+1))
                else:
                    A("  v_pk_fma_f32 v[%d:%d], v[%d:%d], v[%d:%d], v[%d:%d]" % (d, d+1, x, x+1, p, p+1, d, d+1))
    for t in range(6):
        A("  v_add_f32 v%d, v%d, v%d" % (O+2*t, O+2*t, O+2*t+1))
    A("  s_nop 1")
    for i in range(3):
        A("  v_permlane32_swap_b32 v%d, v%d" % (O+2*i, O+2*(i+3)))
    for i in range(3):
        A("  v_add_f32 v%d, v%d, v%d" % (O+2*i, O+2*i, O+2*(i+3)))
    A("  v_lshrrev_b32 v30, 5, v0")
    A("  v_mul_u32_u24 v30, 384, v30")
    A("  v_and_b32 v31, 31, v0")
    A("  v_lshl_add_u32 v30, v31, 2, v30")
    A("  s_mul_i32 s60, s3, 768")
    A("  s_add_u32 s60, s60, %d" % SCR_O)
    A("  v_add_u32 v30, s60, v30")
    for i in range(3):
        A("  ds_write_b32 v30, v%d offset:%d" % (O+2*i, i*128))
    A("  s_mov_b64 exec, 1")
    A("  v_mov_b32 v20, %d" % (SCR_C+4))
    A("  v_mov_b32 v21, 1")
    A("  ds_add_rtn_u32 v21, v20, v21")
    A("  s_mov_b64 exec, -1")
    A("  v_lshlrev_b32 v22, 4, v0")
    A("  v_min_u32 v23, 752, v22")
    A("  v_add_u32 v23, %d, v23" % SCR_O)
    A("  s_waitcnt lgkmcnt(0)")
    stamp("vep")
    A("  v_readfirstlane_b32 s60, v21")
    A("  s_cmp_eq_u32 s60, 3")
    A("  s_cbranch_scc0 L_fin")
    for w in range(4):
        A("  ds_read_b128 v[%d:%d], v23 offset:%d" % (V_S+4*w, V_S+4*w+3, w*768))
    A("  s_mov_b32 exec_lo, -1\n  s_mov_b32 exec_hi, 0xffff")
    A("  s_cmp_eq_u32 s61, 0")
    A("  s_cbranch_scc1 L_cons")
    A("  s_waitcnt lgkmcnt(0)")
    def sum4():
        for i in range(4):
            A("  v_add_f32 v%d, v%d, v%d" % (V_S+i, V_S+i, V_S+4+i))
            A("  v_add_f32 v%d, v%d, v%d" % (V_S+8+i, V_S+8+i, V_S+12+i))
        for i in range(4):
            A("  v_add_f32 v%d, v%d, v%d" % (V_S+i, V_S+i, V_S+8+i))
    sum4()
    for i in range(4):
        A("  v_and_b32 v%d, -2, v%d" % (V_S+i, V_S+i))
    A("  buffer_store_dwordx4 v[%d:%d], v22, s[40:43], s64 offen sc1" % (V_S, V_S+3))
    A("  s_branch L_fin")
    A("L_cons:")
    NP = a.npoll
    def poll(k):
        for c in range(1, 8):
            r = ACC + 32*k + 4*c
            A("  buffer_load_dwordx4 v[%d:%d], v24, s[40:43], s64 offen offset:%d sc1" % (r, r+3, (c*768) % 4096) if c*768 < 4096 else
              "  buffer_load_dwordx4 v[%d:%d], v25, s[40:43], s64 offen offset:%d sc1" % (r, r+3, c*768 - 4096))
    A("  v_mov_b32 v24, v22")
    A("  v_add_u32 v25, 4096, v22")
    for k in range(NP): poll(k)
    A("  s_waitcnt lgkmcnt(0)")
    sum4()
    A("  s_mov_b32 s66, 0")
    A("L_poll:")
    for k in range(NP):
        A("  s_waitcnt vmcnt(%d)" % (7*(NP-1)))
        b = ACC + 32*k
        A("  v_or3_b32 v20, v%d, v%d, v%d" % (b+4, b+5, b+6))
        regs = list(range(b+7, b+32))
        while len(regs) >= 2:
            A("  v_or3_b32 v20, v20, v%d, v%d" % (regs[0], regs[1])); regs = regs[2:]
        if regs: A("  v_or_b32 v20, v20, v%d" % regs[0])
        A("  v_and_b32 v20, 1, v20")
        A("  v_cmp_ne_u32 vcc, 0, v20")
        A("  s_nop 4")
        A("  s_cbranch_vccz L_got%d" % k)
        poll(k)
    A("  s_add_u32 s66, s66, 1")
    A("  s_cmp_lt_u32 s66, %d" % a.spin)
    A("  s_cbranch_scc1 L_poll")
    for k in range(NP):
        A("L_got%d:" % k)
        b = ACC + 32*k
        for c in range(1, 8):
            for i in range(4):
                A("  v_add_f32 v%d, v%d, v%d" % (V_S+i, V_S+i, b+4*c+i))
        if k < NP-1: A("  s_branch L_out")
    A("L_out:")
    A("  v_cvt_pk_bf16_f32 v%d, v%d, v%d" % (V_S+4, V_S, V_S+1))
    A("  v_cvt_pk_bf16_f32 v%d, v%d, v%d" % (V_S+5, V_S+2, V_S+3))
    A("  v_lshlrev_b32 v22, 3, v0")
    A("  s_mul_i32 s60, s62, 384")
    A("  buffer_store_dwordx2 v[%d:%d], v22, s[44:47], s60 offen" % (V_S+4, V_S+5))
    A("L_fin:")
    if a.stamps:
        ns = stamp_n[0]
        A("  s_mov_b64 exec, -1")
        A("  s_memrealtime s[%d:%d]" % (72+2*ns, 73+2*ns))
        A("  s_getreg_b32 s60, hwreg(HW_REG_XCC_ID)")
        A("  s_waitcnt lgkmcnt(0)")
        A("  s_lshl_b32 s21, s2, 2\n  s_add_u32 s21, s21, s3\n  s_lshl_b32 s21, s21, 7\n  s_add_u32 s21, s21, 0x8000000")
        A("  s_add_u32 s38, s38, s21\n  s_addc_u32 s39, s39, 0")
        A("  v_mov_b32 v4, s70\n  v_writelane_b32 v4, s60, 1\n  v_writelane_b32 v4, %d, 3" % (ns+1))
        for k in range(ns+1): A("  v_writelane_b32 v4, s%d, %d" % (72+2*k, 4+k))
        A("  v_writelane_b32 v4, s67, 30")
        A("  v_writelane_b32 v4, s66, 31")
        A("  v_lshlrev_b32 v8, 2, v0\n  s_mov_b64 exec, 0xffffffff\n  global_store_dword v8, v4, s[38:39]")
        import sys
        print("stamps:", " ".join(g.stamp_names + ["end"]), file=sys.stderr)
    A("L_end:\n  s_endpgm")
    A(""".section .rodata,"a"
.p2align 6
.amdhsa_kernel %s
  .amdhsa_next_free_vgpr 288
  .amdhsa_next_free_sgpr 100
  .amdhsa_accum_offset 256
  .amdhsa_group_segment_fixed_size 0
  .amdhsa_kernarg_size 64
  .amdhsa_user_sgpr_count 2
  .amdhsa_user_sgpr_kernarg_segment_ptr 1
  .amdhsa_system_sgpr_workgroup_id_x 1
.end_amdhsa_kernel""" % KNAME)
    return "\n".join(g.L) + "\n"

def parser():
    ap = argparse.ArgumentParser()
    ap.add_argument("-o", default="out.s")
    ap.add_argument("--ring", type=int, default=3)
    ap.add_argument("--nt", type=int, default=1)
    ap.add_argument("--stamps", type=int, default=0)
    ap.add_argument("--abl_e", type=int, default=0)
    ap.add_argument("--abl_c", type=int, default=0)
    ap.add_argument("--order", default="E0,S0,T,S1,S2")
    ap.add_argument("--e1_stage", type=int, default=0)
    ap.add_argument("--trickle", type=int, default=0)
    ap.add_argument("--q_stage", type=int, default=2)
    ap.add_argument("--nst_stage", type=int, default=1)
    ap.add_argument("--nld_stage", type=int, default=5)
    ap.add_argument("--ld_stage", type=int, default=12)
    ap.add_argument("--chk_stage", type=int, default=14)
    ap.add_argument("--npoll", type=int, default=2)
    ap.add_argument("--spin", type=int, default=20000)
    ap.add_argument("--stamp_stages", default="0,1,3,7,11,15")
    return ap
if __name__ == "__main__":
    a = parser().parse_args()
    a.stamp_stages = [int(x) for x in a.stamp_stages.split(",") if x]
    open(a.o, "w").write(gen(a))
```

```python
import argparse, struct, sys

KNAME = "standalone__low_rank_proj_linformer__decode_kernel"
def f32bits(x): return struct.unpack("<I", struct.pack("<f", x))[0]

class Gen:
    def __init__(s, a):
        s.a = a; s.L = []; s.ops = []; s.nlab = 0; s.stamp_names = []
    def A(s, x): s.L.append(x)
    def op(s, label, n=1): s.ops += [label]*n
    def younger(s, labels):
        last = -1
        for i, o in enumerate(s.ops):
            if o in labels: last = i
        assert last >= 0, labels
        return len(s.ops)-1-last
    def wait_vm(s, *labels):
        s.A("  s_waitcnt vmcnt(%d)" % min(s.younger(labels), 63))
    def lab(s, p):
        s.nlab += 1
        return "L_%s%d" % (p, s.nlab)

WAVE_LDS = 34816
RING = 16384
STAGE = 6144
SCR = 4*WAVE_LDS
SCR_S = SCR
SCR_P = SCR + 1024
SCR_O = SCR_P + 4096
SCR_C = SCR_O + 3072
LDS_TOTAL = SCR_C + 64
WS_O = 131072
WS_BYTES = WS_O + 256*768
V_KD = 1
V_VD = 7
V_E = 10
V_TR = 12
V_EA = 14
V_KA = 18
V_N = 31
V_S = 32
ACC = 64
def acc(rh, t): return ACC + (rh*6+t)*16
KF = 64; D16 = 88; PK = 92; D2 = 108; BT = 140
PF = 32; FB = 48; DW = 80; WA = 112; DT = 128; TB1 = 224
S_ODD = "s[90:91]"; S_B4 = "s[92:93]"; S_HALF = "s[94:95]"

def gen(a):
    g = Gen(a); A = g.A
    POL = {0: "", 1: " nt", 2: " sc1", 3: " sc1 nt"}
    NT = POL[a.nt]
    for l in open("standalone__low_rank_proj_linformer__decode.s.ref").read().split("\n"):
        if l.startswith("; @launch") or not l.startswith(";"): break
        if l.startswith("; Override") or l.startswith("; grid=ceil"): continue
        A(l)
    A("; @launch grid=(256,1,1) block=(256,1,1) lds=%d" % LDS_TOTAL)
    A('.amdgcn_target "amdgcn-amd-amdhsa--gfx950"')
    A(".text\n.globl %s\n.p2align 8\n.type %s,@function\n%s:" % (KNAME, KNAME, KNAME))
    A("  s_cmp_ge_u32 s2, 256")
    A("  s_cbranch_scc1 L_end")
    A("  s_load_dwordx16 s[24:39], s[0:1], 0")
    def stamp(name):
        if not a.stamps or name not in a.stamp_list: return
        k = len(g.stamp_names)
        assert k < 8
        g.stamp_names.append(name)
        A("  s_memrealtime s[%d:%d]" % (72+2*k, 73+2*k))
    if a.stamps: A("  s_memrealtime s[70:71]")
    A("  v_lshrrev_b32 v20, 6, v0")
    A("  v_and_b32 v0, 63, v0")
    A("  v_readfirstlane_b32 s3, v20")
    A("  s_movk_i32 s60, 2731")
    for j in range(3):
        A("  v_add_u32 v20, %d, v0" % (j*64) if j else "  v_mov_b32 v20, v0")
        A("  v_mul_u32_u24 v20, s60, v20")
        A("  v_lshrrev_b32 v20, 17, v20")
        A("  v_xor_b32 v20, v20, v0")
        A("  v_lshlrev_b32 v%d, 4, v20" % (V_KD+j))
        A("  v_xor_b32 v%d, 64, v%d" % (V_KD+3+j, V_KD+j))
    A("  s_lshl_b32 s56, s2, 2")
    A("  s_add_u32 s56, s56, s3")
    A("  s_mul_i32 s56, s56, 49152")
    A("  s_mul_i32 s58, s3, %d" % WAVE_LDS)
    A("  s_and_b32 s61, s2, 7")
    A("  s_lshr_b32 s62, s2, 3")
    A("  s_lshl_b32 s59, s61, 10")
    A("  s_lshl_b32 s60, s3, 8")
    A("  s_add_u32 s59, s59, s60")
    A("  s_mov_b32 s10, 50331648\n  s_mov_b32 s11, 0x20000")
    A("  s_mov_b32 s18, 524288\n  s_mov_b32 s19, 0x20000")
    A("  s_mov_b32 s54, 12288\n  s_mov_b32 s55, 0x20000")
    A("  s_mul_i32 s67, s62, 384")
    A("  v_lshrrev_b32 v20, 3, v0")
    A("  v_lshlrev_b32 v20, 13, v20")
    A("  v_lshrrev_b32 v21, 4, v0")
    A("  v_and_b32 v22, 7, v0")
    A("  v_xor_b32 v22, v22, v21")
    A("  v_lshl_add_u32 v%d, v22, 4, v20" % V_E)
    A("  v_xor_b32 v%d, 64, v%d" % (V_E+1, V_E))
    A("  v_lshlrev_b32 v23, 4, v21")
    A("  s_waitcnt lgkmcnt(0)")
    A("  s_mov_b32 s8, s26\n  s_mov_b32 s9, s27")
    A("  s_mov_b32 s16, s30\n  s_mov_b32 s17, s31")
    A("  s_mov_b32 s52, s24\n  s_mov_b32 s53, s25")

    def dma_kv(stage, lo=0, hi=6):
        srd = "s[8:11]" if stage < 8 else "s[12:15]"
        kt = stage % 8; slot = stage % a.ring
        for i in range(lo, hi):
            half, j = divmod(i, 3)
            if j == 0 or i == lo:
                A("  s_add_u32 m0, s58, %d" % (RING + slot*STAGE + half*3072))
                A("  s_add_u32 s57, s56, %d" % (kt*STAGE + half*3072))
            vo = (V_KD + 3*half + j) if stage < 8 else (V_VD + j)
            A("  buffer_load_dwordx4 v%d, %s, s57 offen offset:%d%s lds" % (vo, srd, j*1024, NT))
        g.op("S%d" % stage, hi-lo)
    def dma_e(which, hh, lo=0, hi=8):
        if a.abl_e: return
        srd = "s[16:19]" if which == 'E' else "s[20:23]"
        for i in range(lo, hi):
            if i % 4 == 0 or i == lo:
                A("  s_add_u32 m0, s58, %d" % (hh*8192 + (i & ~3)*1024))
            A("  s_add_u32 s57, s59, %d" % (hh*128 + i*65536 - (i & 3)*1024))
            A("  buffer_load_dwordx4 v%d, %s, s57 offen offset:%d lds" % (V_E + (i & 1), srd, (i & 3)*1024))
        g.op("%s%d" % (which, hh), hi-lo)
    def q_loads():
        for ks in range(6):
            A("  buffer_load_dwordx4 a[%d:%d], v23, s[52:55], s67 offen offset:%d" % (4*ks, 4*ks+3, ks*64))
        g.op("Q", 6)

    order = a.order.split(",")
    for tok in order:
        if ':' in tok:
            nm, rg = tok.split(':'); lo, hi = [int(x) for x in rg.split('-')]
            if nm[0] == 'S': dma_kv(int(nm[1:]), lo, hi)
            else: dma_e('E', int(nm[1:]), lo, hi)
        elif tok[0] == 'S': dma_kv(int(tok[1:]))
        elif tok[0] == 'E': dma_e('E', int(tok[1:]))
        elif tok == 'Q': q_loads()
        elif tok == 'T':
            A("  s_or_b32 s60, s3, s61\n  s_cmp_eq_u32 s60, 0\n  s_cbranch_scc0 L_pro0")
            A("  s_mov_b32 s40, s38\n  s_mov_b32 s41, s39\n  s_mov_b32 s42, %d\n  s_mov_b32 s43, 0x20000" % WS_BYTES)
            A("  s_lshl_b32 s63, s2, 9")
            A("  v_mov_b32 v22, 4")
            A("  buffer_load_dword v30, v22, s[40:43], s63 offen sc1")
            A("L_pro0:")
    assert 'T' in order and 'Q' in order
    A("  s_mov_b32 s12, s28\n  s_mov_b32 s13, s29\n  s_mov_b32 s14, 50331648\n  s_mov_b32 s15, 0x20000")
    A("  s_mov_b32 s20, s32\n  s_mov_b32 s21, s33\n  s_mov_b32 s22, 524288\n  s_mov_b32 s23, 0x20000")
    A("  s_mov_b32 s40, s38\n  s_mov_b32 s41, s39\n  s_mov_b32 s42, %d\n  s_mov_b32 s43, 0x20000" % WS_BYTES)
    A("  s_mov_b32 s44, s34\n  s_mov_b32 s45, s35\n  s_mov_b32 s46, 12288\n  s_mov_b32 s47, 0x20000")
    A("  s_mov_b32 s48, s36\n  s_mov_b32 s49, s37\n  s_mov_b32 s50, 256\n  s_mov_b32 s51, 0x20000")
    A("  s_lshl_b32 s63, s2, 9")
    A("  s_mul_i32 s64, s2, 768")
    A("  s_add_u32 s64, s64, %d" % WS_O)
    A("  s_cmp_eq_u32 s3, 0")
    A("  s_cbranch_scc0 L_pro1")
    A("  v_mov_b32 v24, -1\n  v_mov_b32 v25, -1\n  v_mov_b32 v26, -1\n  v_mov_b32 v27, -1")
    A("  v_lshlrev_b32 v22, 4, v0")
    A("  s_mov_b32 exec_lo, -1\n  s_mov_b32 exec_hi, 0xffff")
    A("  buffer_store_dwordx4 v[24:27], v22, s[40:43], s64 offen sc1")
    A("  s_mov_b64 exec, -1")
    A("  s_nop 1")
    A("  v_mov_b32 v24, 0\n  v_mov_b32 v25, 0")
    A("  v_mov_b32 v22, %d" % SCR_C)
    A("  ds_write_b64 v22, v[24:25]")
    A("L_pro1:")
    A("  s_mov_b32 s90, 0xaaaaaaaa\n  s_mov_b32 s91, 0xaaaaaaaa")
    A("  s_mov_b32 s92, 0xffff0000\n  s_mov_b32 s93, 0xffff0000")
    A("  s_mov_b32 s94, 0\n  s_mov_b32 s95, -1")
    A("  v_lshlrev_b32 v20, 4, v0")
    A("  v_xor_b32 v21, 64, v20")
    A("  s_mov_b32 vcc_lo, 0\n  s_mov_b32 vcc_hi, 0xffff0000\n  v_cndmask_b32 v%d, v20, v21, vcc" % V_VD)
    A("  s_mov_b32 vcc_lo, -1\n  s_mov_b32 vcc_hi, 0\n  v_cndmask_b32 v%d, v20, v21, vcc" % (V_VD+1))
    A("  s_mov_b32 vcc_lo, 0xffff0000\n  s_mov_b32 vcc_hi, -1\n  v_cndmask_b32 v%d, v20, v21, vcc" % (V_VD+2))
    A("  v_and_b32 v20, 15, v0")
    A("  v_mul_u32_u24 v21, 384, v20")
    A("  v_lshrrev_b32 v20, 1, v20")
    A("  v_lshrrev_b32 v22, 4, v0")
    A("  v_xor_b32 v20, v20, v22")
    A("  v_lshl_add_u32 v20, v20, 4, v21")
    A("  s_add_u32 s60, s58, %d" % RING)
    A("  v_add_u32 v%d, s60, v20" % V_KA)
    A("  v_xor_b32 v20, 64, v20")
    A("  v_add_u32 v%d, s60, v20" % (V_KA+1))
    A("  v_lshrrev_b32 v20, 5, v0")
    A("  v_lshlrev_b32 v20, 3, v20")
    A("  v_bfe_u32 v21, v0, 2, 2")
    A("  v_add_u32 v20, v20, v21")
    A("  v_mul_u32_u24 v20, 384, v20")
    A("  v_bfe_u32 v21, v0, 4, 1")
    A("  v_lshl_add_u32 v20, v21, 5, v20")
    A("  v_and_b32 v21, 3, v0")
    A("  v_lshl_add_u32 v20, v21, 3, v20")
    A("  v_add_u32 v20, s60, v20")
    A("  v_bfe_u32 v21, v0, 3, 1")
    A("  v_lshlrev_b32 v21, 6, v21")
    A("  v_add_u32 v%d, v20, v21" % V_TR)
    A("  v_sub_u32 v%d, v20, v21" % (V_TR+1))
    A("  v_and_b32 v20, 31, v0")
    A("  v_bfe_u32 v21, v0, 1, 3")
    A("  v_lshrrev_b32 v22, 5, v0")
    A("  v_xor_b32 v21, v21, v22")
    A("  v_lshlrev_b32 v21, 4, v21")
    A("  v_lshl_add_u32 v20, v20, 7, v21")
    A("  v_add_u32 v%d, s58, v20" % V_EA)
    for ks in range(1, 4):
        A("  v_xor_b32 v%d, %d, v%d" % (V_EA+ks, ks*32, V_EA))
    A("  s_waitcnt lgkmcnt(0)")
    A("  s_barrier")
    stamp("pro")

    BAR = set(int(x) for x in a.bar.split(",") if x)
    TRK = {}; TRKPRE = {}
    for item in a.trk.split(","):
        if '<' in item:
            st, rest = item.split('<'); nm, rg = rest.split(':'); T_ = TRKPRE
        else:
            st, nm, rg = item.split(':'); T_ = TRK
        lo, hi = [int(x) for x in rg.split('-')]
        T_.setdefault(int(st), []).append((nm[0], int(nm[1]), lo, hi))
    def issue_pre(s):
        if s == a.nld_stage:
            A("  s_lshl_b32 s60, s62, 2")
            A("  s_add_u32 s60, s60, 128")
            A("  v_mov_b32 v30, 0")
            A("  buffer_load_dword v%d, v30, s[48:51], s60 offen sc1" % V_N)
            g.op("NLD", 1)
        for (wh, hh_, lo, hi) in TRKPRE.get(s, []): dma_e(wh, hh_, lo, hi)
        if s == a.ld_stage:
            score_loads()
            g.op("SC", 8)
    def issue_post(s):
        for (wh, hh_, lo, hi) in TRK.get(s, []): dma_e(wh, hh_, lo, hi)
        if s in BAR: A("  s_barrier")
    def issue(s):
        issue_pre(s)
        if s + a.ring < 16: dma_kv(s + a.ring)
        issue_post(s)
    def capture(fn):
        n0 = len(g.L); fn(); out = g.L[n0:]; del g.L[n0:]
        res = []
        for x in out:
            if x is not None: res += x.split("\n")
        return res
    def merge(main, fill, first=0):
        n = len(main) - first
        for x in main[:first]: A(x)
        k = 0
        for i, x in enumerate(main[first:]):
            A(x)
            want = ((i+1)*len(fill)) // max(n, 1)
            while k < want: A(fill[k]); k += 1
        while k < len(fill): A(fill[k]); k += 1

    def k_stage(s):
        slot = s % a.ring; base = slot*STAGE
        need = ["S%d" % s]
        if s == 0: need.append("Q")
        g.wait_vm(*need)
        stamp("s%d" % s)
        if s == a.nst_stage:
            lb = g.lab("n")
            A("  s_or_b32 s60, s3, s61")
            A("  s_cmp_eq_u32 s60, 0")
            A("  s_cbranch_scc0 %s" % lb)
            A("  s_mov_b32 s60, 0x9E3779B1")
            A("  v_mul_lo_u32 v30, v30, s60")
            A("  v_add_u32 v30, 0x632BE5AB, v30")
            A("  v_or_b32 v24, 1, v30")
            A("  s_lshl_b32 s60, s62, 2")
            A("  s_add_u32 s60, s60, 128")
            A("  v_mov_b32 v22, 0")
            A("  s_mov_b64 exec, 1")
            A("  buffer_store_dword v24, v22, s[48:51], s60 offen sc1")
            A("  s_mov_b64 exec, -1")
            A("%s:" % lb)
        for ks in range(6):
            A("  ds_read_b128 v[%d:%d], v%d offset:%d" % (KF+4*ks, KF+4*ks+3, V_KA + (ks & 1), base + (ks >> 1)*128))
        for ks in range(6):
            A("  s_waitcnt lgkmcnt(%d)" % (5-ks))
            A("  v_mfma_f32_16x16x32_bf16 v[%d:%d], v[%d:%d], a[%d:%d], %s" % (D16, D16+3, KF+4*ks, KF+4*ks+3, 4*ks, 4*ks+3, "0" if ks == 0 else "v[%d:%d]" % (D16, D16+3)))
        late = (s == 7 and not a.early7) or (s == a.e0_stage and not a.early4)
        if late: A("  s_nop 7")
        elif s == 7 or s == a.e0_stage:
            issue_pre(s); dma_kv(s + a.ring)
        else: issue(s)
        A("  s_nop 1")
        for v in range(4):
            A("  v_and_b32 v%d, 0xffff0000, v%d" % (20+v, D16+v))
        for v in range(4):
            A("  v_sub_f32 v%d, v%d, v%d" % (24+v, D16+v, 20+v))
        for v in range(4):
            A("  v_cndmask_b32 v%d, v%d, v%d, %s" % (20+v, 20+v, 24+v, S_ODD))
        A("  v_cvt_pk_bf16_f32 v%d, v20, v21" % (PK+2*s))
        A("  v_cvt_pk_bf16_f32 v%d, v22, v23" % (PK+2*s+1))
        if s == a.e0_stage:
            e_block(0)
            if late: issue(s)
            else: issue_post(s)
        if s == 7:
            e_block(1)
            k_epilogue()
            if late: issue(s)
            else: issue_post(s)

    def e_block(hh):
        if not a.abl_e: g.wait_vm("E%d" % hh)
        for ks in range(4):
            s = 4*hh + ks
            A("  ds_read_b128 a[24:27], v%d offset:%d" % (V_EA+ks, hh*8192))
            A("  ds_read_b128 a[28:31], v%d offset:%d" % (V_EA+ks, hh*8192+4096))
            A("  v_cndmask_b32 v%d, v%d, 0, %s" % (BT, PK+2*s, S_B4) if False else "  v_cndmask_b32 v%d, v%d, v29, %s" % (BT, PK+2*s, S_B4))
            A("  v_cndmask_b32 v%d, v%d, v29, %s" % (BT+1, PK+2*s+1, S_B4))
            A("  v_cndmask_b32 v%d, v29, v%d, %s" % (BT+2, PK+2*s, S_B4))
            A("  v_cndmask_b32 v%d, v29, v%d, %s" % (BT+3, PK+2*s+1, S_B4))
            A("  s_waitcnt lgkmcnt(0)")
            A("  s_nop 0")
            for rh in range(2):
                c = "0" if s == 0 else "v[%d:%d]" % (D2+16*rh, D2+16*rh+15)
                A("  v_mfma_f32_32x32x16_bf16 v[%d:%d], a[%d:%d], v[%d:%d], %s" % (D2+16*rh, D2+16*rh+15, 24+4*rh, 27+4*rh, BT, BT+3, c))

    def k_epilogue():
        A("  s_nop 15")
        for v in range(16):
            A("  v_permlane16_swap_b32 v%d, v%d" % (D2+v, D2+16+v))
        for v in range(16):
            A("  v_add_f32 v%d, v%d, v%d" % (D2+v, D2+v, D2+16+v))
        A("  s_nop 1")
        for v in range(16):
            A("  v_add_f32_dpp v%d, v%d, v%d quad_perm:[1,0,3,2] row_mask:0xf bank_mask:0xf" % (D2+v, D2+v, D2+v))
        A("  v_bfe_u32 v20, v0, 4, 1")
        A("  v_lshlrev_b32 v20, 7, v20")
        A("  v_lshrrev_b32 v21, 5, v0")
        A("  v_lshl_add_u32 v20, v21, 4, v20")
        A("  s_lshl_b32 s60, s3, 8")
        A("  s_add_u32 s60, s60, %d" % SCR_S)
        A("  v_add_u32 v20, s60, v20")
        A("  s_mov_b32 exec_lo, 0x00010001\n  s_mov_b32 exec_hi, 0x00010001")
        for vq in range(4):
            A("  ds_write_b128 v20, v[%d:%d] offset:%d" % (D2+4*vq, D2+4*vq+3, vq*32))
        A("  s_mov_b64 exec, 1")
        A("  v_mov_b32 v20, %d" % SCR_C)
        A("  v_mov_b32 v21, 1")
        A("  ds_add_rtn_u32 v21, v20, v21")
        A("  s_mov_b64 exec, -1")
        g.wait_vm("NLD")
        A("  v_readfirstlane_b32 s65, v%d" % V_N)
        A("  s_mov_b32 s66, 0")
        A("L_nn:")
        A("  s_cmp_lg_u32 s65, 0")
        A("  s_cbranch_scc1 L_nok")
        A("  s_add_u32 s66, s66, 1")
        A("  s_cmp_ge_u32 s66, %d" % a.spin)
        A("  s_cbranch_scc1 L_nok")
        A("  s_lshl_b32 s60, s62, 2")
        A("  s_add_u32 s60, s60, 128")
        A("  v_mov_b32 v22, 0")
        A("  buffer_load_dword v%d, v22, s[48:51], s60 offen sc1" % V_N)
        A("  s_waitcnt vmcnt(0)")
        A("  v_readfirstlane_b32 s65, v%d" % V_N)
        A("  s_branch L_nn")
        A("L_nok:")
        A("  s_waitcnt lgkmcnt(0)")
        A("  v_readfirstlane_b32 s60, v21")
        A("  s_cmp_eq_u32 s60, 3")
        A("  s_cbranch_scc0 L_pub1")
        A("  v_lshlrev_b32 v20, 2, v0")
        A("  v_add_u32 v20, %d, v20" % SCR_S)
        for w in range(4):
            A("  ds_read_b32 v%d, v20 offset:%d" % (V_S+w, w*256))
        A("  s_waitcnt lgkmcnt(0)")
        A("  v_add_f32 v%d, v%d, v%d" % (V_S, V_S, V_S+1))
        A("  v_add_f32 v%d, v%d, v%d" % (V_S+2, V_S+2, V_S+3))
        A("  v_add_f32 v%d, v%d, v%d" % (V_S, V_S, V_S+2))
        A("  v_mov_b32 v%d, s65" % (V_S+1))
        A("  v_lshlrev_b32 v22, 3, v0")
        A("  buffer_store_dwordx2 v[%d:%d], v22, s[40:43], s63 offen sc1" % (V_S, V_S+1))
        A("L_pub1:")
        stamp("kep")

    def tr_reads(s, buf=0, order=range(6)):
        base = (s % a.ring)*STAGE
        for t in order:
            va = V_TR + (t & 1)
            A("  ds_read_b64_tr_b16 a[%d:%d], v%d offset:%d" % (buf+4*t, buf+4*t+1, va, base + t*64))
            A("  ds_read_b64_tr_b16 a[%d:%d], v%d offset:%d" % (buf+4*t+2, buf+4*t+3, va, base + t*64 + 1536))

    P = a.pstage
    def v_mfmas(s):
        ksl = s % 8
        out = []
        for t in range(6):
            for rh in range(2):
                c = "0" if ksl == 0 else "v[%d:%d]" % (acc(rh, t), acc(rh, t)+15)
                out.append("  v_mfma_f32_32x32x16_bf16 v[%d:%d], a[%d:%d], a[%d:%d], %s" % (acc(rh, t), acc(rh, t)+15, 24+4*rh, 27+4*rh, 4*t, 4*t+3, c))
        return out
    def fb_reads():
        for ks in range(4):
            for hh in range(2):
                r = FB + 16*hh + 4*ks
                A("  ds_read_b64_tr_b16 a[%d:%d], v%d offset:%d" % (r, r+1, W_F+2*hh, ks*2048))
                A("  ds_read_b64_tr_b16 a[%d:%d], v%d offset:%d" % (r+2, r+3, W_F+2*hh+1, ks*2048 + 512))
    def v_stage(s):
        ksl = s % 8; hh = ksl >> 2; ks = ksl & 3
        need = ["S%d" % s]
        if not a.abl_e:
            if ksl == 0: need.append("F0")
            if ksl == 4 or s == P: need.append("F1")
        if s == P: need.append("SC")
        g.wait_vm(*need)
        stamp("s%d" % s)
        A("  ds_read_b128 a[24:27], v%d offset:%d" % (V_EA+ks, hh*8192))
        A("  ds_read_b128 a[28:31], v%d offset:%d" % (V_EA+ks, hh*8192+4096))
        tr_reads(s)
        if s == a.waddr_stage: w_addresses()
        if s == P: tags_bad()
        A("  s_waitcnt lgkmcnt(0)")
        mf = v_mfmas(s)
        if s != P:
            issue_pre(s)
            if s + a.ring < 16:
                if a.ilv:
                    for i in range(6):
                        dma_kv(s + a.ring, i, i+1)
                        A(mf[2*i]); A(mf[2*i+1])
                else:
                    dma_kv(s + a.ring)
                    for x in mf: A(x)
            else:
                for x in mf: A(x)
            issue_post(s)
        else:
            A("  s_mov_b32 s67, 0")
            A("  s_cmp_eq_u64 vcc, 0")
            A("  s_cbranch_scc1 L_sc_first")
            A("  s_mov_b32 s67, 1")
            score_loads()
            A("L_sc_first:")
            mark = len(g.ops)
            issue(s)
            nafter = len(g.ops) - mark
            fb_reads()
            score_wait(nafter)
            stamp("sc")
            merge(capture(softmax), mf)

    def score_loads():
        A("  s_and_b32 s60, s2, 0xf8")
        A("  s_lshl_b32 s60, s60, 9")
        A("  v_lshlrev_b32 v22, 3, v0")
        for c in range(8):
            A("  buffer_load_dwordx2 v[%d:%d], v22, s[40:43], s60 offen offset:%d sc1" % (V_S+2*c, V_S+2*c+1, c*512))
    def tags_bad():
        A("  v_cmp_ne_u32 vcc, s65, v%d" % (V_S+1))
        for c in range(1, 8):
            A("  v_cmp_ne_u32 s[68:69], s65, v%d" % (V_S+2*c+1))
            A("  s_or_b64 vcc, vcc, s[68:69]")
    def score_wait(nafter):
        A("  s_mov_b32 s66, 0")
        A("  s_cmp_eq_u32 s67, 0")
        A("  s_cbranch_scc1 L_sm_ok")
        A("  s_waitcnt vmcnt(%d)" % nafter)
        A("L_sm_chk:")
        tags_bad()
        A("  s_cmp_eq_u64 vcc, 0")
        A("  s_cbranch_scc1 L_sm_ok")
        A("  s_add_u32 s66, s66, 1")
        A("  s_cmp_ge_u32 s66, %d" % a.spin)
        A("  s_cbranch_scc1 L_sm_ok")
        score_loads()
        A("  s_waitcnt vmcnt(0)")
        A("  s_branch L_sm_chk")
        A("L_sm_ok:")
        if a.stamps: A("  s_add_u32 s98, s66, s67")

    def allreduce(opn):
        for sh in (8, 4, 2, 1):
            A("  s_nop 1")
            A("  %s_dpp v21, v21, v21 row_ror:%d row_mask:0xf bank_mask:0xf" % (opn, sh))
        for sw in ("v_permlane16_swap_b32", "v_permlane32_swap_b32"):
            A("  v_mov_b32 v16, v21")
            A("  s_nop 1")
            A("  %s v21, v16" % sw)
            A("  %s v21, v21, v16" % opn)
    V_RS = 31
    def softmax_sum():
        A("  v_mov_b32 v21, v20")
        allreduce("v_add_f32")
        A("  v_rcp_f32 v%d, v21" % V_RS)
    def softmax():
        A("  v_add_f32 v20, v%d, v%d" % (V_S, V_S+2))
        A("  v_add_f32 v21, v%d, v%d" % (V_S+4, V_S+6))
        A("  v_add_f32 v22, v%d, v%d" % (V_S+8, V_S+10))
        A("  v_add_f32 v23, v%d, v%d" % (V_S+12, V_S+14))
        A("  v_add_f32 v20, v20, v21")
        A("  v_add_f32 v22, v22, v23")
        A("  v_add_f32 v20, v20, v22")
        A("  v_mul_f32 v20, 0x%08x, v20" % f32bits(192**-0.5 * 1.4426950408889634))
        A("  v_mov_b32 v21, v20")
        allreduce("v_max_f32")
        A("  v_sub_f32 v20, v20, v21")
        A("  v_exp_f32 v20, v20")
        A("  s_lshl_b32 s60, s3, 10")
        A("  s_add_u32 s60, s60, %d" % SCR_P)
        A("  v_lshl_add_u32 v22, v0, 2, s60")
        A("  ds_write_b32 v22, v20")
        A("  v_and_b32 v23, 0xffff0000, v20")
        A("  v_sub_f32 v23, v20, v23")
        A("  v_lshl_add_u32 v21, v0, 1, s60")
        A("  v_cvt_pk_bf16_f32 v23, v23, v23")
        A("  ds_write_b16_d16_hi v21, v20 offset:256")
        A("  ds_write_b16 v21, v23 offset:384")
        for ks in range(4):
            A("  ds_read_b128 a[%d:%d], v%d offset:%d" % (PF+4*ks, PF+4*ks+3, W_PF, 256 + ks*32))
        for rh in range(2):
            for vq in range(4):
                A("  ds_read_b128 v[%d:%d], v%d offset:%d" % (V_S+rh*16+vq*4, V_S+rh*16+vq*4+3, W_PR, (32*rh+8*vq)*4))

    W_PF = 1; W_F = 2; W_WW = 6; W_WA = 10; W_OW = 11; W_PR = 30
    def w_addresses():
        assert all(st < a.waddr_stage for st in list(TRK) + list(TRKPRE)) and a.waddr_stage > 4 and a.waddr_stage <= a.pstage
        A("  s_lshl_b32 s60, s3, 10")
        A("  s_add_u32 s60, s60, %d" % SCR_P)
        A("  v_lshrrev_b32 v25, 5, v0")
        A("  v_and_b32 v24, 1, v0")
        A("  v_lshlrev_b32 v24, 7, v24")
        A("  v_lshl_add_u32 v24, v25, 4, v24")
        A("  v_add_u32 v%d, s60, v24" % W_PF)
        A("  v_lshl_add_u32 v%d, v25, 4, s60" % W_PR)
        A("  v_bfe_u32 v26, v0, 2, 2")
        A("  v_lshl_add_u32 v26, v25, 3, v26")
        A("  v_lshlrev_b32 v26, 7, v26")
        A("  v_bfe_u32 v27, v0, 4, 1")
        A("  v_bfe_u32 v28, v0, 1, 1")
        A("  v_lshl_add_u32 v27, v27, 1, v28")
        A("  v_bfe_u32 v28, v0, 3, 1")
        A("  v_lshl_add_u32 v28, v25, 2, v28")
        A("  v_xor_b32 v27, v27, v28")
        A("  v_lshl_add_u32 v26, v27, 4, v26")
        A("  v_and_b32 v27, 1, v0")
        A("  v_lshl_add_u32 v26, v27, 3, v26")
        A("  s_add_u32 s57, s58, 8192")
        A("  v_add_u32 v%d, s57, v26" % W_F)
        for k, x in ((1, 32), (2, 64), (3, 96)):
            A("  v_xor_b32 v27, %d, v26" % x)
            A("  v_add_u32 v%d, s57, v27" % (W_F+k))
        A("  v_and_b32 v26, 31, v0")
        A("  v_lshl_add_u32 v26, v26, 1, s60")
        A("  v_lshl_add_u32 v%d, v25, 7, v26" % W_WW)
        A("  v_mul_u32_u24 v26, 384, v25")
        A("  v_and_b32 v27, 31, v0")
        A("  v_lshl_add_u32 v26, v27, 2, v26")
        A("  s_mul_i32 s60, s3, 768")
        A("  s_add_u32 s60, s60, %d" % SCR_O)
        A("  v_add_u32 v%d, s60, v26" % W_OW)
    assert W_WA == 10

    O = 18
    def fold_body():
        for rh in range(2):
            for vp in range(8):
                for t in range(6):
                    d = O + 2*t; x = acc(rh, t) + 2*vp; p = V_S + rh*16 + 2*vp
                    if rh == 0 and vp == 0:
                        A("  v_pk_mul_f32 v[%d:%d], v[%d:%d], v[%d:%d]" % (d, d+1, x, x+1, p, p+1))
                    else:
                        A("  v_pk_fma_f32 v[%d:%d], v[%d:%d], v[%d:%d], v[%d:%d]" % (d, d+1, x, x+1, p, p+1, d, d+1))
    def fold_end():
        for t in range(6):
            A("  v_add_f32 v%d, v%d, v%d" % (O+2*t, O+2*t, O+2*t+1))
        A("  s_nop 1")
        for i in range(3):
            A("  v_permlane32_swap_b32 v%d, v%d" % (O+2*i, O+2*(i+3)))
        for i in range(3):
            A("  v_add_f32 v%d, v%d, v%d" % (O+2*i, O+2*i, O+2*(i+3)))
        for i in range(3):
            A("  v_mul_f32 v%d, v%d, v%d" % (O+2*i, O+2*i, V_RS))

    class Fill:
        def __init__(f, lines): f.l = lines; f.k = 0
        def __call__(f, n):
            for x in f.l[f.k:f.k+n]: A(x)
            f.k = min(len(f.l), f.k+n)
        def rest(f): f(len(f.l))

    LAST = (0, 3, 1, 4, 2, 5)
    def w_mfmas(s, buf, counted, fill=None):
        q = s - 12
        for n, t in enumerate(LAST if s == 15 else range(6)):
            if counted: A("  s_waitcnt lgkmcnt(%d)" % (2*(5-n)))
            c = "0" if s == P+1 else "a[%d:%d]" % (DT+16*t, DT+16*t+15)
            A("  v_mfma_f32_32x32x16_bf16 a[%d:%d], a[%d:%d], a[%d:%d], %s" % (DT+16*t, DT+16*t+15, WA+4*q, WA+4*q+3, buf+4*t, buf+4*t+3, c))
            if fill: fill(7)

    A("  v_mov_b32 v29, 0")
    for s in range(8): k_stage(s)
    for s in range(8, P+1): v_stage(s)
    stamp("sm")
    bufs = [0, TB1]
    urgent = P + 1 + a.ring < 16
    def first_reads():
        g.wait_vm("S%d" % (P+1))
        stamp("s%d" % (P+1))
        tr_reads(P+1, bufs[0])
    if urgent:
        first_reads()
        A("  s_waitcnt lgkmcnt(0)")
        issue(P+1)
    sm2 = Fill(capture(softmax_sum))
    for ks in range(4):
        if not urgent: A("  s_waitcnt lgkmcnt(%d)" % (11-ks))
        for hh in range(2):
            r = FB + 16*hh + 4*ks; d = DW + 16*hh
            A("  v_mfma_f32_32x32x16_bf16 a[%d:%d], a[%d:%d], a[%d:%d], %s" % (d, d+15, PF+4*ks, PF+4*ks+3, r, r+3, "0" if ks == 0 else "a[%d:%d]" % (d, d+15)))
            sm2(4)
    sm2.rest()
    if not urgent:
        first_reads()
        A("  s_waitcnt lgkmcnt(12)")
    fold = Fill(capture(fold_body) + capture(fold_end))
    fold(12)
    for hh in range(2):
        A("  v_accvgpr_read_b32 v14, a%d" % (DW+16*hh))
        A("  v_accvgpr_read_b32 v15, a%d" % (DW+16*hh+1))
        fold(1)
        A("  v_add_f32 v14, v14, v15")
        A("  v_mul_f32 v14, v14, v%d" % V_RS)
        A("  v_and_b32 v15, 0xffff0000, v14")
        A("  v_sub_f32 v15, v14, v15")
        A("  v_lshrrev_b32 v14, 16, v14")
        A("  v_cvt_pk_bf16_f32 v15, v15, v15")
        A("  v_cndmask_b32 v14, v14, v15, %s" % S_HALF)
        A("  ds_write_b16 v%d, v14 offset:%d" % (W_WW, 512 + hh*64))
    for q in range(P+1-12, 4):
        A("  ds_read_b128 a[%d:%d], v%d offset:%d" % (WA+4*q, WA+4*q+3, W_PF, 512 + q*32))
    fold(a.fold_lds)
    stamp("w")
    for n, s in enumerate(range(P+1, 16)):
        if s < 15:
            g.wait_vm("S%d" % (s+1))
            stamp("s%d" % (s+1))
            tr_reads(s+1, bufs[(n+1) & 1], LAST if s+1 == 15 else range(6))
            A("  s_waitcnt lgkmcnt(12)")
            w_mfmas(s, bufs[n & 1], False, fold)
            if s == 14: fold.rest()
        else:
            A("  v_mov_b32 v24, %d" % (SCR_C+4))
            A("  v_mov_b32 v25, 1")
            w_mfmas(s, bufs[n & 1], True)
    A("  s_nop 3")
    for i in range(3):
        A("  v_accvgpr_read_b32 v26, a%d" % (DT+16*i))
        A("  v_accvgpr_read_b32 v27, a%d" % (DT+16*i+1))
        A("  v_accvgpr_read_b32 v28, a%d" % (DT+16*(i+3)))
        A("  v_accvgpr_read_b32 v29, a%d" % (DT+16*(i+3)+1))
        A("  v_add_f32 v26, v26, v27")
        A("  v_add_f32 v27, v28, v29")
        A("  v_cndmask_b32 v26, v26, v27, %s" % S_HALF)
        A("  v_add_f32 v%d, v%d, v26" % (O+2*i, O+2*i))
        A("  ds_write_b32 v%d, v%d offset:%d" % (W_OW, O+2*i, i*128))
    A("  s_mov_b64 exec, 1")
    A("  ds_add_rtn_u32 v25, v24, v25")
    A("  s_mov_b64 exec, -1")
    A("  v_lshlrev_b32 v22, 4, v0")
    A("  v_min_u32 v23, 752, v22")
    A("  v_add_u32 v23, %d, v23" % SCR_O)
    A("  s_waitcnt lgkmcnt(0)")
    stamp("vep")
    A("  v_readfirstlane_b32 s60, v25")
    A("  s_cmp_eq_u32 s60, 3")
    A("  s_cbranch_scc0 L_fin")
    for w in range(4):
        A("  ds_read_b128 v[%d:%d], v23 offset:%d" % (V_S+4*w, V_S+4*w+3, w*768))
    A("  s_mov_b32 exec_lo, -1\n  s_mov_b32 exec_hi, 0xffff")
    A("  s_cmp_eq_u32 s61, 0")
    A("  s_cbranch_scc1 L_cons")
    A("  s_waitcnt lgkmcnt(0)")
    def sum4():
        for i in range(4):
            A("  v_add_f32 v%d, v%d, v%d" % (V_S+i, V_S+i, V_S+4+i))
            A("  v_add_f32 v%d, v%d, v%d" % (V_S+8+i, V_S+8+i, V_S+12+i))
        for i in range(4):
            A("  v_add_f32 v%d, v%d, v%d" % (V_S+i, V_S+i, V_S+8+i))
    sum4()
    for i in range(4):
        A("  v_and_b32 v%d, -2, v%d" % (V_S+i, V_S+i))
    A("  buffer_store_dwordx4 v[%d:%d], v22, s[40:43], s64 offen sc1" % (V_S, V_S+3))
    A("  s_branch L_fin")
    A("L_cons:")
    NP = a.npoll
    def poll(k):
        for c in range(1, 8):
            r = ACC + 32*k + 4*c
            if c*768 < 4096: A("  buffer_load_dwordx4 v[%d:%d], v24, s[40:43], s64 offen offset:%d sc1" % (r, r+3, c*768))
            else: A("  buffer_load_dwordx4 v[%d:%d], v25, s[40:43], s64 offen offset:%d sc1" % (r, r+3, c*768 - 4096))
    A("  v_mov_b32 v24, v22")
    A("  v_add_u32 v25, 4096, v22")
    for k in range(NP): poll(k)
    A("  s_waitcnt lgkmcnt(0)")
    sum4()
    A("  s_mov_b32 s66, 0")
    A("L_poll:")
    for k in range(NP):
        A("  s_waitcnt vmcnt(%d)" % (7*(NP-1)))
        b = ACC + 32*k
        A("  v_or3_b32 v20, v%d, v%d, v%d" % (b+4, b+5, b+6))
        regs = list(range(b+7, b+32))
        while len(regs) >= 2:
            A("  v_or3_b32 v20, v20, v%d, v%d" % (regs[0], regs[1])); regs = regs[2:]
        if regs: A("  v_or_b32 v20, v20, v%d" % regs[0])
        A("  v_and_b32 v20, 1, v20")
        A("  v_cmp_ne_u32 vcc, 0, v20")
        A("  s_nop 4")
        A("  s_cbranch_vccz L_got%d" % k)
        poll(k)
    A("  s_add_u32 s66, s66, 1")
    A("  s_cmp_lt_u32 s66, %d" % a.spin)
    A("  s_cbranch_scc1 L_poll")
    for k in range(NP):
        A("L_got%d:" % k)
        b = ACC + 32*k
        for c in range(1, 8):
            for i in range(4):
                A("  v_add_f32 v%d, v%d, v%d" % (V_S+i, V_S+i, b+4*c+i))
        if k < NP-1: A("  s_branch L_out")
    A("L_out:")
    A("  v_cvt_pk_bf16_f32 v%d, v%d, v%d" % (V_S+4, V_S, V_S+1))
    A("  v_cvt_pk_bf16_f32 v%d, v%d, v%d" % (V_S+5, V_S+2, V_S+3))
    A("  v_lshlrev_b32 v22, 3, v0")
    A("  s_mul_i32 s60, s62, 384")
    A("  buffer_store_dwordx2 v[%d:%d], v22, s[44:47], s60 offen%s" % (V_S+4, V_S+5, " sc1" if a.outsc1 else ""))
    A("L_fin:")
    if a.stamps:
        ns = len(g.stamp_names)
        A("  s_mov_b64 exec, -1")
        A("  s_memrealtime s[%d:%d]" % (72+2*ns, 73+2*ns))
        A("  s_getreg_b32 s60, hwreg(HW_REG_XCC_ID)")
        A("  s_getreg_b32 s61, hwreg(HW_REG_HW_ID)")
        A("  s_waitcnt lgkmcnt(0)")
        A("  s_lshl_b32 s21, s2, 2\n  s_add_u32 s21, s21, s3\n  s_lshl_b32 s21, s21, 7\n  s_add_u32 s21, s21, 0x8000000")
        A("  s_add_u32 s38, s38, s21\n  s_addc_u32 s39, s39, 0")
        A("  v_mov_b32 v4, s70\n  v_writelane_b32 v4, s60, 1\n  v_writelane_b32 v4, s61, 2\n  v_writelane_b32 v4, %d, 3" % (ns+1))
        for k in range(ns+1): A("  v_writelane_b32 v4, s%d, %d" % (72+2*k, 4+k))
        A("  v_writelane_b32 v4, s98, 30")
        A("  v_writelane_b32 v4, s66, 31")
        A("  v_lshlrev_b32 v8, 2, v0\n  s_mov_b64 exec, 0xffffffff\n  global_store_dword v8, v4, s[38:39]")
        print("stamps:", " ".join(g.stamp_names + ["end"]), file=sys.stderr)
    A("L_end:\n  s_endpgm")
    A(""".section .rodata,"a"
.p2align 6
.amdhsa_kernel %s
  .amdhsa_next_free_vgpr 504
  .amdhsa_next_free_sgpr 100
  .amdhsa_accum_offset 256
  .amdhsa_group_segment_fixed_size 0
  .amdhsa_kernarg_size 64
  .amdhsa_user_sgpr_count 2
  .amdhsa_user_sgpr_kernarg_segment_ptr 1
  .amdhsa_system_sgpr_workgroup_id_x 1
.end_amdhsa_kernel""" % KNAME)
    return "\n".join(x for x in g.L if x is not None) + "\n"

def parser():
    ap = argparse.ArgumentParser()
    ap.add_argument("-o", default="out.s")
    ap.add_argument("--ring", type=int, default=3)
    ap.add_argument("--nt", type=int, default=1)
    ap.add_argument("--stamps", type=int, default=0)
    ap.add_argument("--stamp_list", default="s0,s3,s7,kep,s11,s13,s15,vep")
    ap.add_argument("--abl_e", type=int, default=0)
    ap.add_argument("--order", default="S0:0-3,Q,S0:3-6,T,S1,E0:0-1,S2,E0:1-2")
    ap.add_argument("--trk", default="0:E0:2-5,1:E0:5-8,2:E1:0-4,3:E1:4-8,4:F0:0-4,5:F0:4-8,7:F1:0-3,8:F1:3-6,9<F1:6-8")
    ap.add_argument("--bar", default="")
    ap.add_argument("--pstage", type=int, default=12)
    ap.add_argument("--ilv", type=int, default=1)
    ap.add_argument("--fold_lds", type=int, default=24)
    ap.add_argument("--waddr_stage", type=int, default=10)
    ap.add_argument("--early4", type=int, default=0)
    ap.add_argument("--early7", type=int, default=0)
    ap.add_argument("--abl_tail", type=int, default=0)
    ap.add_argument("--e0_stage", type=int, default=4)
    ap.add_argument("--nst_stage", type=int, default=1)
    ap.add_argument("--nld_stage", type=int, default=4)
    ap.add_argument("--ld_stage", type=int, default=10)
    ap.add_argument("--chk_stage", type=int, default=12)
    ap.add_argument("--sm_stage", type=int, default=13)
    ap.add_argument("--npoll", type=int, default=2)
    ap.add_argument("--outsc1", type=int, default=0)
    ap.add_argument("--spin", type=int, default=20000)
    return ap
if __name__ == "__main__":
    a = parser().parse_args()
    a.stamp_list = a.stamp_list.split(",")
    open(a.o, "w").write(gen(a))
```
